```python
import torch

def _softmax(x, axis=-1):
    return torch.softmax(x, dim=axis)
def _gelu(x):
    return torch.nn.functional.gelu(x, approximate="tanh")
def _silu(x):
    return torch.nn.functional.silu(x)
def _sigmoid(x):
    return torch.sigmoid(x)
def _layernorm(x, axis=-1, eps=1e-5):
    m = x.mean(dim=axis, keepdim=True)
    v = x.var(dim=axis, keepdim=True, unbiased=False)
    return (x - m) / torch.sqrt(v + eps)
def _scatter_add(tgt, idx, src, axis=0):
    return tgt.clone().index_add_(axis, idx, src)
def _segment_sum(src, seg, n):
    out = torch.zeros((n,) + src.shape[1:], dtype=src.dtype)
    return out.index_add_(0, seg, src)
def _pad(x, pw):
    flat = tuple(v for pair in reversed(pw) for v in pair)
    return torch.nn.functional.pad(x, flat)

kernel_name = 'parallel_sum__sliding_block__dense_activation_gelu__prompt'

def setup_inputs():

    _w = (lambda a: (lambda t: t.to(torch.bfloat16) if t.is_floating_point() else t)(torch.as_tensor(a)))
    def _A_setup():
        B, S, D = 1, 2048, 512
        return {
            "x": _w((lambda *s: torch.randn(*s, dtype=torch.bfloat16) * 0.05)(B, S, D)),
            "wqkv": _w((lambda *s: torch.randn(*s, dtype=torch.bfloat16) * 0.05)(D, 3 * D)),
            "wo": _w((lambda *s: torch.randn(*s, dtype=torch.bfloat16) * 0.05)(D, D)),
        }
    _A_in = _A_setup()

    def _B_setup():
        B, S, D, F = 1, 2048, 512, 1792
        return {
            "x": _w((lambda *s: torch.randn(*s, dtype=torch.bfloat16) * 0.05)(B, S, D)),
            "w1": _w((lambda *s: torch.randn(*s, dtype=torch.bfloat16) * 0.8)(D, F) * (D ** -0.5)),
            "b1": _w((lambda *s: torch.randn(*s, dtype=torch.bfloat16) * 0.8)(F) * 0.01),
            "w2": _w((lambda *s: torch.randn(*s, dtype=torch.bfloat16) * 0.8)(F, D) * (F ** -0.5)),
            "b2": _w((lambda *s: torch.randn(*s, dtype=torch.bfloat16) * 0.8)(D) * 0.01),
        }
    _B_in = _B_setup()

    return {
        "A_x": _A_in["x"],
        "A_wqkv": _A_in["wqkv"],
        "A_wo": _A_in["wo"],
        "B_x": _B_in["x"],
        "B_w1": _B_in["w1"],
        "B_b1": _B_in["b1"],
        "B_w2": _B_in["w2"],
        "B_b2": _B_in["b2"],
    }

def reference(A_x, A_wqkv, A_wo, B_x, B_w1, B_b1, B_w2, B_b2):
    def _A_ref(x, wqkv, wo):
        B, S, D = x.shape
        H = 32; Dh = D // H; W = 256
        qkv = (lambda x, *d: x.permute(*d))((x @ wqkv).reshape(B, S, 3, H, Dh), 2, 0, 3, 1, 4)
        q, k, v = qkv[0], qkv[1], qkv[2]
        scores = torch.einsum("bhqd,bhkd->bhqk", q, k) * (Dh ** -0.5)
        idx = torch.arange(S)
        mask = (idx[:, None] - idx[None, :] >= 0) & (idx[:, None] - idx[None, :] < W)
        scores = torch.where(mask[None, None], scores, -1e9)
        p = _softmax(scores, axis=-1)
        o = torch.einsum("bhqk,bhkd->bhqd", p, v)
        return (lambda x, *d: x.permute(*d))(o, 0, 2, 1, 3).reshape(B, S, D) @ wo

    def _B_ref(x, w1, b1, w2, b2):
        h = torch.einsum("bsd,df->bsf", x, w1) + b1
        h = _gelu(h)
        return torch.einsum("bsf,fd->bsd", h, w2) + b2

    x = A_x
    xn = _layernorm(x, axis=-1)
    return x + _A_ref(xn, A_wqkv, A_wo) + _B_ref(xn, B_w1, B_b1, B_w2, B_b2)
```

```python
import sys, os, subprocess, struct, ctypes
sys.path.insert(0, "cdna_kernels")
import numpy as np
import cdna_launch as cl

TEMPLATE = """; @launch grid=({grid},1,1) block=({block},1,1) lds={lds}
.amdgcn_target "amdgcn-amd-amdhsa--gfx950"
.text
.globl mb_kernel
.p2align 8
.type mb_kernel,@function
mb_kernel:
    s_load_dwordx2 s[4:5], s[0:1], 0
    v_lshrrev_b32 v1, 6, v0
    v_and_b32 v2, 63, v0
    v_lshlrev_b32 v3, 4, v0
    v_lshlrev_b32 v4, 3, v0
{init}
    s_waitcnt lgkmcnt(0)
    s_mov_b32 s12, s4
    s_mov_b32 s13, s5
    s_mov_b32 s14, 0x100000
    s_mov_b32 s15, 0x20000
    s_mov_b32 s6, {iters}
    s_barrier
    s_memtime s[8:9]
    s_waitcnt lgkmcnt(0)
.p2align 6
L_loop:
{body}
    s_sub_u32 s6, s6, 1
    s_cmp_lg_u32 s6, 0
    s_cbranch_scc1 L_loop
    s_waitcnt vmcnt(0) lgkmcnt(0)
    s_memtime s[10:11]
    s_waitcnt lgkmcnt(0)
    s_sub_u32 s10, s10, s8
    v_mov_b32 v5, s10
    s_lshl_b32 s3, s2, 4
    v_add_u32 v1, s3, v1
    v_lshlrev_b32 v1, 2, v1
    v_cmp_eq_u32 vcc, 0, v2
    s_and_saveexec_b64 s[16:17], vcc
    buffer_store_dword v5, v1, s[12:15], 0 offen
    s_waitcnt vmcnt(0)
    s_endpgm
.section .rodata,"a"
.p2align 6
.amdhsa_kernel mb_kernel
  .amdhsa_next_free_vgpr {vgpr}
  .amdhsa_next_free_sgpr 102
  .amdhsa_accum_offset {accum}
  .amdhsa_group_segment_fixed_size 0
  .amdhsa_kernarg_size 8
  .amdhsa_user_sgpr_count 2
  .amdhsa_user_sgpr_kernarg_segment_ptr 1
  .amdhsa_system_sgpr_workgroup_id_x 1
.end_amdhsa_kernel
"""

def build(name, asm):
    os.makedirs("mbb", exist_ok=True)
    s = f"mbb/{name}.s"; co = f"mbb/{name}.co"
    open(s, "w").write(cl.with_harness_metadata(asm, "mb_kernel", 1))
    r = subprocess.run(["clang", "-x", "assembler", "-target", "amdgcn-amd-amdhsa", "-mcpu=gfx950", s, "-o", co], capture_output=True, text=True)
    if r.returncode != 0:
        print(r.stderr[:3000]); raise SystemExit(1)
    return co

def run(name, body, init="", wps=1, iters=200, grid=1, lds=65536, vgpr=128, accum=128, n_inst=None):
    block = 256 * wps
    initv = "\n".join(f"    v_mov_b32 v{i}, 1.0" for i in range(8, min(vgpr, accum)))
    asm = TEMPLATE.format(grid=grid, block=block, lds=lds, init=initv + "\n" + init, body=body, iters=iters, vgpr=vgpr, accum=accum)
    co = build(name, asm)
    if not os.path.exists('/dev/kfd'):
        return None
    k = cl.AsmKernel(co, "mb_kernel")
    out = cl.DeviceBuffer(1 << 20)
    res = []
    for rep in range(3):
        k.launch((grid, 1, 1), (block, 1, 1), struct.pack("<Q", out.ptr), lds)
        cl._hip.hipDeviceSynchronize()
        o = out.to_numpy(np.uint32, (grid, 16))[:, :4 * wps]
        res.append(o.max() / iters)
    k.unload()
    print(f"{name:40s} wps={wps} grid={grid} cyc/iter={min(res):9.1f}" + (f"  per-inst(per wave)={min(res)/n_inst:6.2f}  per-inst(SIMD)={min(res)/n_inst/wps:6.2f}" if n_inst else ""), flush=True)
    return min(res)
```

```python
from mb import *
def body(pattern, nm=8):
    s = []
    c = 0
    for i in range(nm):
        acc = 96 + 16 * (i % 2)
        for p in pattern:
            d = 8 + (c * 2) % 32; c += 1
            if p == 'M': s.append(f"    v_mfma_f32_32x32x16_bf16 v[{acc}:{acc+15}], v[84:87], v[88:91], v[{acc}:{acc+15}]")
            elif p == 'f': s.append(f"    v_fma_f32 v{d}, v80, v81, v{d}")
            elif p == 'e': s.append(f"    v_exp_f32 v{d}, v80")
            elif p == 't': s.append(f"    ds_read_b64_tr_b16 v[{d+40}:{d+41}], v4")
            elif p == 'w': s.append(f"    s_waitcnt lgkmcnt(4)")
            elif p == 's': s.append(f"    s_add_u32 s30, s30, 1")
            elif p == 'n': s.append(f"    s_nop 0")
    return "\n".join(s)
for wps in (1, 2):
    for pat in ("Mttffff", "Mttwffff", "Mttwfff", "Mttffffff", "Mttwffffff", "Mffffffss", "Mffffffs", "Mfffffn", "Mttee", "Mtteeff", "Mttweef", "ef", "eff", "efff", "effff", "ee", "ffff"):
        run("x_" + pat, body(pat), wps=wps, n_inst=8)
```

```python
from mb import *
T = """; @launch grid=(256,1,1) block=(256,1,1) lds=65536
.amdgcn_target "amdgcn-amd-amdhsa--gfx950"
.text
.globl mb_kernel
.p2align 8
.type mb_kernel,@function
mb_kernel:
    s_memrealtime s[40:41]
    s_load_dwordx2 s[4:5], s[0:1], 0
    v_lshrrev_b32 v1, 6, v0       ; wave
    v_and_b32 v2, 63, v0          ; lane
    v_lshlrev_b32 v3, 4, v2
    v_readfirstlane_b32 s22, v1
    s_and_b32 s20, s2, 7          ; xcd
    s_lshr_b32 s21, s2, 3         ; idx 0..31
    ; region id = xcd*{xr} + (idx >> {gsh}) ; member = idx & {gmask}
    s_mul_i32 s23, s20, {xr}
    s_lshr_b32 s28, s21, {gsh}
    s_add_u32 s23, s23, s28
    s_mul_i32 s23, s23, {rbytes}
    s_and_b32 s28, s21, {gmask}
    s_mul_i32 s28, s28, {rot}
    s_lshl_b32 s29, s22, 10
    s_add_u32 s28, s28, s29
    s_waitcnt lgkmcnt(0)
    s_mov_b32 s12, s4
    s_mov_b32 s13, s5
    s_mov_b32 s14, 0x100000
    s_mov_b32 s15, 0x20000
    s_add_u32 s24, s4, 0x100000
    s_addc_u32 s25, s5, 0
    s_mov_b32 s26, 0x8000000
    s_mov_b32 s27, 0x20000
    s_mov_b32 s6, {iters}
    s_memtime s[8:9]
    s_waitcnt lgkmcnt(0)
L_loop:
{body}
    s_sub_u32 s6, s6, 1
    s_cmp_lg_u32 s6, 0
    s_cbranch_scc1 L_loop
    s_waitcnt vmcnt(0) lgkmcnt(0)
    s_memtime s[10:11]
    s_memrealtime s[42:43]
    s_waitcnt lgkmcnt(0)
    s_sub_u32 s10, s10, s8
    v_mov_b32 v4, s10
    v_mov_b32 v5, s40
    v_mov_b32 v6, s42
    v_mov_b32 v7, 0
    s_lshl_b32 s3, s2, 2
    v_add_u32 v1, s3, v1
    v_lshlrev_b32 v1, 4, v1
    v_cmp_eq_u32 vcc, 0, v2
    s_and_saveexec_b64 s[16:17], vcc
    buffer_store_dwordx4 v[4:7], v1, s[12:15], 0 offen
    s_waitcnt vmcnt(0)
    s_endpgm
.section .rodata,"a"
.p2align 6
.amdhsa_kernel mb_kernel
  .amdhsa_next_free_vgpr 160
  .amdhsa_next_free_sgpr 102
  .amdhsa_accum_offset 160
  .amdhsa_group_segment_fixed_size 0
  .amdhsa_kernarg_size 8
  .amdhsa_user_sgpr_count 2
  .amdhsa_user_sgpr_kernarg_segment_ptr 1
  .amdhsa_system_sgpr_workgroup_id_x 1
.end_amdhsa_kernel
"""
big = None
def runc(name, xr, gsh, rbytes, rot, depth=32, flush="both"):
    global big
    body = []
    for i in range(depth):
        r = 16 + 4 * i
        body.append(f"    s_and_b32 s28, s28, {rbytes-1}")
        body.append(f"    s_add_u32 s30, s23, s28")
        body.append(f"    s_waitcnt vmcnt({depth-1})")
        body.append(f"    buffer_load_dwordx4 v[{r}:{r+3}], v3, s[24:27], s30 offen")
        body.append(f"    s_add_u32 s28, s28, 4096")
    iters = rbytes // 4096 // depth
    asm = T.format(xr=xr, gsh=gsh, gmask=(1 << gsh) - 1, rbytes=rbytes, rot=rot, iters=iters, body="\n".join(body))
    co = build(name, asm)
    if not os.path.exists('/dev/kfd'): return
    k = cl.AsmKernel(co, "mb_kernel")
    out = cl.DeviceBuffer((1 << 20) + (128 << 20))
    if big is None: big = cl.DeviceBuffer(512 << 20)
    H = cl._hip
    res = []
    for rep in range(5):
        if flush in ("src", "both"):
            H.hipMemsetAsync(ctypes.c_void_p(out.ptr), rep, out.nbytes, None)
        if flush == "both":
            H.hipMemsetAsync(ctypes.c_void_p(big.ptr), rep, big.nbytes, None)
        k.launch((256, 1, 1), (256, 1, 1), struct.pack("<Q", out.ptr), 65536)
        H.hipDeviceSynchronize()
        o = out.to_numpy(np.uint32, (256, 4, 4)).astype(np.int64)
        res.append((np.median(o[:, :, 0]), (o[:, :, 2].max() - o[:, :, 1].min()) / 100.0))
    k.unload()
    r = res[2:]
    c = np.median([x[0] for x in r]); t = np.median([x[1] for x in r])
    print(f"{name:34s} flush={flush:5s} perWG={rbytes>>10}KB cyc={c:8.0f} B/clk/CU={rbytes/c:6.1f} span={t:6.2f}us", flush=True)
for fl in ("both", "src", "none"):
    runc("distinct128K", 32, 0, 128 << 10, 0, flush=fl)
    runc("distinct512K", 32, 0, 512 << 10, 0, flush=fl)
    runc("sh8_512K_same", 4, 3, 512 << 10, 0, flush=fl)
    runc("sh8_512K_rot", 4, 3, 512 << 10, 64 << 10, flush=fl)
    runc("sh8_allxcd_512K_same", 0, 3, 512 << 10, 0, flush=fl)
    runc("sh8_allxcd_512K_rot", 0, 3, 512 << 10, 64 << 10, flush=fl)
    runc("sh4_128K_same", 8, 2, 128 << 10, 0, flush=fl)
    runc("sh4_128K_rot", 8, 2, 128 << 10, 32 << 10, flush=fl)
    runc("sh32_128K_same", 1, 5, 128 << 10, 0, flush=fl)
    runc("sh32_128K_rot", 1, 5, 128 << 10, 4 << 10, flush=fl)
```

```python
import math, struct

NAME = "parallel_sum__sliding_block__dense_activation_gelu__prompt"

MB = 1 << 20
QF = 0
KF = 2 * MB
VF = 4 * MB
A2 = 6 * MB
FLG = 15 * MB
WS_USED = 16 * MB

LOG2E = math.log2(math.e)
K0 = math.sqrt(2.0 / math.pi)
GC1 = -2.0 * K0 * LOG2E
GC2 = GC1 * 0.044715
QSCALE = LOG2E * 0.25


def f32(x):
    return "0x%08x" % struct.unpack("<I", struct.pack("<f", x))[0]


def vr(b, n):
    return f"v[{b}:{b+n-1}]"


def sr(b, n):
    return f"s[{b}:{b+n-1}]"


def kd(name, vgpr, sgpr=102, accum=None):
    if globals()["STAMP"]:
        vgpr = 256
    if accum is None:
        accum = (vgpr + 3) // 4 * 4
    return f""".section .rodata,"a"
.p2align 6
.amdhsa_kernel {name}
  .amdhsa_next_free_vgpr {vgpr}
  .amdhsa_next_free_sgpr {sgpr}
  .amdhsa_accum_offset {accum}
  .amdhsa_group_segment_fixed_size 0
  .amdhsa_kernarg_size 88
  .amdhsa_user_sgpr_count 2
  .amdhsa_user_sgpr_kernarg_segment_ptr 1
  .amdhsa_system_sgpr_workgroup_id_x 1
.end_amdhsa_kernel
"""


def khead(name):
    return f""".text
.globl {name}
.p2align 8
.type {name},@function
{name}:
"""


def srd(e, d, lo, hi, nbytes):
    e(f"s_mov_b32 s{d}, s{lo}")
    e(f"s_and_b32 s{d+1}, s{hi}, 0xffff")
    e(f"s_mov_b32 s{d+2}, {nbytes}")
    e(f"s_mov_b32 s{d+3}, 0x20000")


def interleave(e, main, fill, slots, start=0):
    from emit import cost
    total = sum(cost(f) for f in fill)
    n = len(main) - start
    fi = 0
    done = 0
    for gi, g in enumerate(main):
        for it in g:
            e.run(it)
        if gi >= start and n > 0:
            target = total * (gi - start + 1) / n
            if slots is not None:
                target = max(target, 0)
            while fi < len(fill) and done + cost(fill[fi]) <= target + 0.5:
                e.run(fill[fi])
                done += cost(fill[fi])
                fi += 1
    while fi < len(fill):
        e.run(fill[fi])
        fi += 1


STAMP = False
STAMP_OFF = 15 * MB + 512 * 1024


def _stamp(e, idx):
    e("s_waitcnt lgkmcnt(0)")
    e("s_memrealtime s[100:101]")
    e("s_waitcnt lgkmcnt(0)")
    e(f"v_mov_b32 v{248+idx}, s100")
    e("s_memtime s[100:101]")
    e("s_waitcnt lgkmcnt(0)")
    e(f"v_mov_b32 v{252+idx}, s100")
    e.lgkm = []


def stamp_begin(e):
    if globals()["STAMP"]:
        _stamp(e, 0)
        e("v_mov_b32 v250, 0")
        e("v_mov_b32 v251, 0")


def stamp_mid(e, idx):
    if globals()["STAMP"]:
        _stamp(e, 2 + idx)


def stamp_end(e, kidx, swave, sws):
    if globals()["STAMP"]:
        e("s_waitcnt vmcnt(0)")
        _stamp(e, 1)
        e("s_lshl_b32 s100, s2, 3")
        e(f"s_add_u32 s100, s100, s{swave}")
        e("s_lshl_b32 s100, s100, 5")
        e(f"s_add_u32 s100, s100, {STAMP_OFF + kidx * 256 * 8 * 32}")
        e("v_mov_b32 v8, 0")
        e("s_mov_b64 exec, 1")
        e(f"buffer_store_dwordx4 v[248:251], v8, s[{sws}:{sws+3}], s100 offen")
        e(f"buffer_store_dwordx4 v[252:255], v8, s[{sws}:{sws+3}], s100 offen offset:16")
```

```python
import re

TRANS = ("v_exp_f32", "v_log_f32", "v_rcp_f32", "v_rsq_f32", "v_sqrt_f32", "v_sin_f32", "v_cos_f32")


def _regs(tok):
    tok = tok.strip()
    if tok.startswith("-"):
        tok = tok[1:]
    m = re.fullmatch(r"abs\((.*)\)|\|(.*)\|", tok)
    if m:
        tok = m.group(1) or m.group(2)
    m = re.fullmatch(r"([vsa])(\d+)", tok)
    if m:
        return [(m.group(1), int(m.group(2)))]
    m = re.fullmatch(r"([vsa])\[(\d+):(\d+)\]", tok)
    if m:
        return [(m.group(1), i) for i in range(int(m.group(2)), int(m.group(3)) + 1)]
    if tok in ("vcc", "exec"):
        return [(tok, 0), (tok, 1)]
    if tok in ("vcc_lo", "exec_lo"):
        return [(tok[:-3], 0)]
    if tok in ("vcc_hi", "exec_hi"):
        return [(tok[:-3], 1)]
    if tok == "m0":
        return [("m0", 0)]
    return []


def parse(line):
    s = line.split(";")[0].strip()
    if not s or s.endswith(":") or s.startswith("."):
        return None
    parts = s.split(None, 1)
    mn = parts[0]
    rest = parts[1] if len(parts) > 1 else ""
    ops, cur, depth = [], "", 0
    for ch in rest:
        if ch in "[(":
            depth += 1
        if ch in "])":
            depth -= 1
        if ch == "," and depth == 0:
            ops.append(cur.strip())
            cur = ""
        else:
            cur += ch
    if cur.strip():
        ops.append(cur.strip())
    mods = []
    if ops:
        toks = ops[-1].split()
        ops[-1] = toks[0] if toks else ""
        mods = toks[1:]
    d = dict(mn=mn, ops=ops, mods=mods, dst=[], src=[], kind="other", srcC=[], srcAB=[])
    R = [_regs(o) for o in ops]
    if mn.startswith("v_mfma"):
        d["kind"] = "mfma"
        d["dst"] = R[0]
        d["srcAB"] = R[1] + R[2]
        d["srcC"] = R[3]
        d["src"] = R[1] + R[2] + R[3]
        d["passes"] = 8 if "32x32x16" in mn else (4 if "16x16x32" in mn else 16)
    elif mn.startswith("v_"):
        d["kind"] = "valu"
        base = re.sub(r"_(e32|e64|dpp|sdwa)$", "", mn)
        d["base"] = base
        if base.startswith("v_permlane") and "swap" in base:
            d["dst"] = R[0] + R[1]
            d["src"] = R[0] + R[1]
        elif base.startswith("v_cmp"):
            d["dst"] = R[0]
            d["src"] = sum(R[1:], [])
            if base.startswith("v_cmpx"):
                d["dst"] = d["dst"] + [("exec", 0), ("exec", 1)]
        elif base in ("v_add_co_u32", "v_sub_co_u32", "v_addc_co_u32", "v_subb_co_u32", "v_subrev_co_u32"):
            d["dst"] = R[0] + R[1]
            d["src"] = sum(R[2:], [])
        elif base == "v_nop":
            pass
        else:
            d["dst"] = R[0]
            d["src"] = sum(R[1:], [])
            if base in ("v_fmac_f32", "v_dot2c_f32_bf16", "v_writelane_b32"):
                d["src"] = d["src"] + R[0]
        d["trans"] = base in TRANS
        d["dot"] = base.startswith("v_dot")
        d["dpp"] = mn.endswith("_dpp") or any(m.startswith(("row_", "quad_perm", "wave_")) for m in mods)
    elif mn.startswith("ds_"):
        d["kind"] = "ds"
        if mn.startswith(("ds_read", "ds_bpermute", "ds_permute", "ds_swizzle")):
            d["dst"] = R[0]
            d["src"] = sum(R[1:], [])
        else:
            d["src"] = sum(R, [])
    elif mn.startswith(("buffer_", "global_")):
        d["kind"] = "vmem"
        islds = "lds" in mods or "_lds_" in mn
        d["lds"] = islds
        if "load" in mn and not islds:
            d["dst"] = R[0]
            d["src"] = sum(R[1:], [])
        elif "atomic" in mn and "sc0" in mods:
            d["dst"] = R[0]
            d["src"] = sum(R, [])
        else:
            d["src"] = sum(R, [])
            if "store" in mn and ("x4" in mn or "x3" in mn):
                d["widestore"] = R[0] if mn.startswith("buffer_") else R[1]
        if islds:
            d["src"] = d["src"] + [("m0", 0)]
    elif mn.startswith("s_"):
        d["kind"] = "salu"
        if mn in ("s_nop", "s_waitcnt", "s_barrier", "s_endpgm", "s_setprio", "s_sleep") or mn.startswith(("s_cbranch", "s_branch")):
            pass
        elif mn.startswith("s_cmp") or mn.startswith("s_bitcmp"):
            d["src"] = sum(R, [])
        elif "saveexec" in mn:
            d["dst"] = R[0] + [("exec", 0), ("exec", 1)]
            d["src"] = sum(R[1:], [])
        else:
            d["dst"] = R[0]
            d["src"] = sum(R[1:], [])
    return d


def states_of(d):
    if d["mn"] == "s_nop":
        return int(d["ops"][0], 0) + 1
    return 1


def needed(prod, cons):
    n = 0
    pd, cs, cd = set(prod["dst"]), set(cons["src"]), set(cons["dst"])
    pk, ck = prod["kind"], cons["kind"]
    if pk == "valu":
        pv = {r for r in pd if r[0] in "va"}
        psg = {r for r in pd if r[0] in ("s", "vcc")}
        pex = {r for r in pd if r[0] == "exec"}
        if ck == "mfma" and pv & cs:
            n = max(n, 3 if prod.get("dot") else 2)
        if ck == "valu":
            if prod.get("trans") and not cons.get("trans") and pv & cs:
                n = max(n, 1)
            if cons["base"].startswith("v_permlane") and pv & cs:
                n = max(n, 2)
            if cons["base"] in ("v_readfirstlane_b32", "v_readlane_b32") and pv & cs:
                n = max(n, 1)
            if cons.get("dpp") and pv & cs:
                n = max(n, 2)
            if psg & cs:
                n = max(n, 4 if cons["base"] in ("v_readlane_b32", "v_writelane_b32") else 2)
            if prod.get("dot") and (pv & (cs | cd)):
                if cons["base"] == prod["base"]:
                    ab = set()
                    if cons["base"] == "v_dot2c_f32_bf16":
                        ab = set(_regs(cons["ops"][1]) + _regs(cons["ops"][2]))
                    else:
                        ab = set(_regs(cons["ops"][1]) + _regs(cons["ops"][2]))
                    if pv & ab:
                        n = max(n, 3)
                else:
                    n = max(n, 3)
            if pex:
                n = max(n, 5)
        if ck in ("vmem", "ds"):
            if prod.get("dot") and pv & cs:
                n = max(n, 3)
            if prod.get("trans") and pv & cs:
                n = max(n, 1)
        if ck == "vmem" and psg & cs:
            n = max(n, 5)
        if ck == "salu" and psg & cs:
            n = max(n, 2)
        if ck == "mfma" and pex:
            n = max(n, 4)
    elif pk == "mfma":
        p = prod["passes"]
        big = {2: 5, 4: 8, 8: 12, 16: 20}[p]
        if ck == "mfma":
            if pd & set(cons["srcAB"]):
                n = max(n, big)
            if pd & set(cons["srcC"]):
                if prod["dst"] == cons["srcC"] and prod["mn"] == cons["mn"]:
                    n = max(n, 2 if p == 2 else 0)
                else:
                    n = max(n, {2: 4, 4: 6, 8: 10, 16: 18}[p])
            elif pd & cd:
                if prod["mn"] != cons["mn"]:
                    n = max(n, big)
        elif ck in ("valu", "vmem", "ds"):
            if pd & (cs | cd):
                n = max(n, big)
        if ck == "valu" and set(prod["srcC"]) & cd:
            n = max(n, {2: 1, 4: 3, 8: 7, 16: 15}[p])
    elif pk == "salu":
        if ("m0", 0) in pd and ck == "vmem" and cons.get("lds"):
            n = max(n, 1)
    elif pk == "vmem":
        ws = prod.get("widestore")
        if ws and set(ws) & cd:
            n = max(n, 2 if ck == "valu" else 1)
    return n


def fix_hazards(lines, window=24):
    out = []
    hist = []
    for ln in lines:
        d = parse(ln)
        if d is None:
            out.append(ln)
            continue
        need = 0
        dist = 0
        for p in reversed(hist):
            n = needed(p, d)
            if n - dist > need:
                need = n - dist
            dist += states_of(p)
            if dist >= window:
                break
        while need > 0:
            k = min(need, 16)
            nop = f"    s_nop {k-1}"
            out.append(nop)
            hist.append(parse(nop))
            need -= k
        out.append(ln)
        hist.append(d)
        if len(hist) > 64:
            hist = hist[-48:]
    return out


class Emit:
    def __init__(self):
        self.lines = []
        self.lgkm = []
        self.vm = []

    def __call__(self, s):
        for l in s.strip().split("\n"):
            l = l.strip()
            if l:
                self.lines.append("    " + l)

    def label(self, l):
        self.lines.append(l + ":")

    def raw(self, l):
        self.lines.append(l)

    def comment(self, c):
        self.lines.append("    ; " + c)

    def ds(self, s, tag=None):
        self(s)
        self.lgkm.append(tag)

    def vmem(self, s, tag=None):
        if len(self.vm) >= 60:
            self("s_waitcnt vmcnt(44)")
            self.vm = self.vm[-44:]
        self(s)
        self.vm.append(tag)

    def _cnt(self, q, tag):
        idx = [i for i, t in enumerate(q) if t == tag]
        if not idx:
            return None
        return len(q) - 1 - idx[-1]

    def wait(self, ds=None, vm=None):
        parts = []
        if vm is not None:
            n = 0 if vm == "*" else self._cnt(self.vm, vm)
            if n is not None and (vm != "*" or self.vm or True):
                assert n <= 63, n
                parts.append(f"vmcnt({n})")
                self.vm = self.vm[len(self.vm) - n:] if n else []
        if ds is not None:
            n = 0 if ds == "*" else self._cnt(self.lgkm, ds)
            if n is not None:
                if n > 15:
                    n = 15
                parts.append(f"lgkmcnt({n})")
                self.lgkm = self.lgkm[len(self.lgkm) - n:] if n else []
        if parts:
            self("s_waitcnt " + " ".join(parts))

    def run(self, item):
        if isinstance(item, str):
            self(item)
        elif item[0] == "ds":
            self.ds(item[1], item[2])
        elif item[0] == "vm":
            self.vmem(item[1], item[2])
        elif item[0] == "wds":
            self.wait(ds=item[1])
        elif item[0] == "wvm":
            self.wait(vm=item[1])
        else:
            raise ValueError(item)

    def text(self):
        return "\n".join(fix_hazards(self.lines)) + "\n"


def cost(item):
    s = item if isinstance(item, str) else (item[1] if item[0] in ("ds", "vm") else "s_waitcnt")
    mn = s.split()[0]
    if mn in TRANS or mn.startswith("v_permlane"):
        return 2
    return 1
```

```python
from emit import Emit
from common import *
import common

SLOT = 16384
NSLOT = 9
MISC = NSLOT * SLOT
B1L = MISC
RSL = MISC + 1024
LDS_TOTAL = MISC + 2048

FQ = FLG
FH = FLG + 4096
FO = FLG + 12288
NFLAGB = 16384

ST = " sc1"
LD = " sc1"
SPIN_MAX = 1 << 22

sX, sWS, sDBG, sWQ, sW1, sB1, sW2, sWO, sB2, sOUT = 28, 32, 36, 40, 44, 48, 52, 56, 60, 64
sR, sCI, sTY, sWV, sRB, sG, sEP = 4, 5, 6, 7, 8, 9, 10
sT0, sT1, sT2, sT3 = 11, 12, 13, 14
sP = list(range(15, 28))
sMASK = 64

X0 = 16
ACC1 = (144, 160)
WF0 = 176
NB, PD = 6, 5
TA, TT, TP = 200, 216, 224
vL16 = 1
vT0, vT1, vTH, vADDR = 2, 3, 4, 5
vRSTD, vRSQ, vBC, vC2, vRSA, vEP, vZ = 6, 7, 8, 9, 10, 11, 12
KR, VR, QR = 16, 56, 136
SB = (144, 160, 176)
NM, OA = 192, 208
PB = (224, 232)
MK = 240
ACC2 = 16
AF = 80
DA = 4
BW = 112
BR = 128
NBR = 15
GS, QS, SS = 1088, 4352, 17408


def jobs(ty):
    if ty == 0:
        return [("Q", 0, 0), ("Q", 0, 1), ("K", 4, 0), ("K", 4, 1), ("F", 8, 0), ("F", 8, 1), ("H", 12, 0)]
    return [("V", 0, 0), ("V", 0, 1), ("F", 4, 0), ("F", 4, 1), ("F", 8, 0), ("F", 8, 1)]


def chunk_addr(c):
    if c < 12:
        return (c % NSLOT) * SLOT
    return (3 + (c - 12) // 2) * SLOT + ((c - 12) & 1) * 8192


_lbl = [0]


def newlabel(p):
    _lbl[0] += 1
    return f"L_{p}_{_lbl[0]}"


def get_epoch(e, vtmp, vzero):
    L = newlabel("ep")
    D = newlabel("epd")
    e(f"s_mov_b32 s{sT0}, 0")
    e.label(L)
    e(f"buffer_load_dword v{vtmp}, v{vzero}, {sr(sDBG,4)}, 0 offen sc1")
    e("s_waitcnt vmcnt(0)")
    e(f"v_readfirstlane_b32 s{sEP}, v{vtmp}")
    e(f"s_add_u32 s{sT0}, s{sT0}, 1")
    e(f"s_cmp_lg_u32 s{sEP}, 0")
    e(f"s_cbranch_scc1 {D}")
    e("s_sleep 2")
    e(f"s_cmp_lt_u32 s{sT0}, {SPIN_MAX}")
    e(f"s_cbranch_scc1 {L}")
    e.label(D)
    e.vm = []


def poll(e, vaddr, vtmp, mask=None):
    L = newlabel("pl")
    D = newlabel("pld")
    e(f"s_mov_b32 s{sT0}, 0")
    e.label(L)
    e(f"buffer_load_dword v{vtmp}, v{vaddr}, {sr(sWS,4)}, 0 offen sc1")
    e("s_waitcnt vmcnt(0)")
    e(f"v_cmp_ne_u32 vcc, s{sEP}, v{vtmp}")
    e(f"s_add_u32 s{sT0}, s{sT0}, 1")
    e("s_nop 0")
    if mask is None:
        e("s_cmp_eq_u64 vcc, 0")
    else:
        e(f"s_and_b32 s{sT1}, vcc_lo, {mask}")
        e(f"s_cmp_eq_u32 s{sT1}, 0")
    e(f"s_cbranch_scc1 {D}")
    e("s_sleep 1")
    e(f"s_cmp_lt_u32 s{sT0}, {SPIN_MAX}")
    e(f"s_cbranch_scc1 {L}")
    e.label(D)
    e.vm = []


def prologue(e):
    e("s_load_dwordx8 s[68:75], s[0:1], 0")
    e("s_load_dwordx8 s[76:83], s[0:1], 32")
    e("s_load_dwordx4 s[84:87], s[0:1], 64")
    e("s_load_dwordx2 s[88:89], s[0:1], 80")
    e("s_cmp_ge_u32 s2, 256")
    e("s_cbranch_scc1 L_end")
    e("v_lshrrev_b32 v10, 6, v0")
    e("v_and_b32 v0, 63, v0")
    e(f"s_and_b32 s{sT0}, s2, 7")
    e(f"s_lshr_b32 s{sT1}, s2, 3")
    e(f"v_readfirstlane_b32 s{sWV}, v10")
    e(f"s_and_b32 s{sT2}, s{sT0}, 1")
    e(f"s_lshl_b32 s{sT2}, s{sT2}, 3")
    e(f"s_and_b32 s{sT3}, s{sT1}, 7")
    e(f"s_add_u32 s{sR}, s{sT2}, s{sT3}")
    e(f"s_lshr_b32 s{sT2}, s{sT0}, 1")
    e(f"s_lshr_b32 s{sT3}, s{sT1}, 3")
    e(f"s_lshr_b32 s{sTY}, s{sT3}, 1")
    e(f"s_and_b32 s{sT3}, s{sT3}, 1")
    e(f"s_lshl_b32 s{sT2}, s{sT2}, 1")
    e(f"s_add_u32 s{sCI}, s{sT2}, s{sT3}")
    e(f"s_lshl_b32 s{sT2}, s{sT0}, 2")
    e(f"s_and_b32 s{sT3}, s{sT1}, 3")
    e(f"s_add_u32 s{sRB}, s{sT2}, s{sT3}")
    e(f"s_lshr_b32 s{sG}, s{sT1}, 2")
    e(f"v_lshlrev_b32 v{vL16}, 4, v0")
    e("s_waitcnt lgkmcnt(0)")
    srd(e, sX, 68, 69, 2048 * 1024)
    srd(e, sWS, 88, 89, WS_USED)
    srd(e, sDBG, 86, 87, 256)
    e(f"s_cmp_ge_u32 s{sWV}, 4")
    e("s_cbranch_scc1 L_loader")


def c_load_ln(e):
    sXL, sXG, sRT = sP[0], sP[1], sP[2]
    e("s_setprio 2")
    e("v_lshrrev_b32 v10, 4, v0")
    e("v_and_b32 v11, 15, v0")
    for m in range(4):
        e(f"v_add_u32 v{12+m}, {4*m}, v10")
        e(f"v_xor_b32 v{12+m}, v{12+m}, v11")
        e(f"v_lshlrev_b32 v{12+m}, 4, v{12+m}")
        e(f"v_lshl_add_u32 v{12+m}, v10, 10, v{12+m}")
    e(f"s_lshl_b32 s{sXL}, s{sWV}, 15")
    e(f"s_lshl_b32 s{sXG}, s{sR}, 17")
    e(f"s_add_u32 s{sXG}, s{sXG}, s{sXL}")
    e(f"s_add_u32 s{sXL}, s{sXL}, {SLOT}")
    for cb in range(4):
        for j in range(8):
            e(f"s_add_u32 m0, s{sXL}, {cb*8192 + j*1024}")
            e(f"s_add_u32 s{sT0}, s{sXG}, {j*4096 + cb*256}")
            e.vmem(f"buffer_load_dwordx4 v{12 + (j & 3)}, {sr(sX,4)}, s{sT0} offen lds", ("x", cb))
    e("v_and_b32 v10, 31, v0")
    e("v_lshrrev_b32 v11, 5, v0")
    e("v_and_b32 v12, 15, v0")
    e("v_xor_b32 v12, v12, v11")
    e("v_lshlrev_b32 v12, 4, v12")
    e("v_lshl_add_u32 v12, v10, 8, v12")
    e(f"v_add_u32 v12, s{sXL}, v12")
    for s in range(8):
        e(f"v_xor_b32 v{TA+s}, {(2*s) << 4}, v12")
    e("v_and_b32 v13, 15, v0")
    e("v_lshrrev_b32 v14, 2, v13")
    e("v_and_b32 v15, 3, v0")
    e("v_lshlrev_b32 v15, 3, v15")
    e("v_bfe_u32 v10, v0, 4, 1")
    e("v_lshl_add_u32 v15, v10, 5, v15")
    e(f"v_lshl_add_u32 v{vT0}, v11, 10, v15")
    e(f"v_lshl_add_u32 v{vT0}, v14, 7, v{vT0}")
    e("v_bfe_u32 v10, v0, 3, 1")
    e(f"v_lshl_add_u32 v{vT0}, v10, 6, v{vT0}")
    e(f"v_xor_b32 v{vT1}, 64, v{vT0}")
    e(f"v_lshl_add_u32 v{vTH}, v11, 9, v15")
    e(f"v_lshl_add_u32 v{vTH}, v14, 6, v{vTH}")
    e(f"v_lshlrev_b32 v{vBC}, 4, v11")
    e(f"v_mov_b32 v{vC2}, {f32(GC2)}")
    for a in range(8):
        e(f"v_mov_b32 v{TT+a}, 0")
    e(f"v_mov_b32 v{TP}, 0x3f803f80")
    e(f"v_mov_b32 v{TP+1}, 0x00003f80")
    e(f"v_mov_b32 v{TP+2}, 0x3f800000")
    for cb in range(4):
        e.wait(vm=("x", cb))
        for s in range(8):
            e.ds(f"ds_read_b128 {vr(X0 + 4*(8*cb+s), 4)}, v{TA+s} offset:{cb*8192}", ("xf", cb, s))
        if cb > 0:
            p = cb - 1
            e.wait(ds=("xf", p, 7))
            for d in range(32):
                e(f"v_dot2c_f32_bf16 v{TT + (d & 3)}, v{X0 + 32*p + d}, v{TP}")
    e.wait(ds="*")
    stamp_mid(e, 0)
    e("s_barrier")
    for d in range(32):
        e(f"v_dot2c_f32_bf16 v{TT + (d & 3)}, v{X0 + 96 + d}, v{TP}")
    e(f"v_add_f32 v{TT}, v{TT}, v{TT+1}")
    e(f"v_add_f32 v{TT+2}, v{TT+2}, v{TT+3}")
    e(f"v_add_f32 v10, v{TT}, v{TT+2}")
    e("v_mov_b32 v11, v10")
    e("v_permlane32_swap_b32 v10, v11")
    e("v_add_f32 v10, v10, v11")
    e(f"v_mul_f32 v10, {f32(-1.0/512)}, v10")
    for d0 in range(0, 128, 4):
        tb = TA + (8 if (d0 >> 2) & 1 else 0)
        for j in range(4):
            e(f"v_dot2_f32_bf16 v{tb+2*j}, v{X0+d0+j}, v{TP+1}, v10")
            e(f"v_dot2_f32_bf16 v{tb+2*j+1}, v{X0+d0+j}, v{TP+2}, v10")
        if d0 > 0:
            for j in range(4):
                e(f"v_dot2c_f32_bf16 v{TT+4+j}, v{X0+d0-4+j}, v{X0+d0-4+j}")
        for j in range(4):
            e(f"v_cvt_pk_bf16_f32 v{X0+d0+j}, v{tb+2*j}, v{tb+2*j+1}")
    for j in range(4):
        e(f"v_dot2c_f32_bf16 v{TT+4+j}, v{X0+124+j}, v{X0+124+j}")
    e(f"v_add_f32 v{TT+4}, v{TT+4}, v{TT+5}")
    e(f"v_add_f32 v{TT+6}, v{TT+6}, v{TT+7}")
    e(f"v_add_f32 v10, v{TT+4}, v{TT+6}")
    e("v_mov_b32 v11, v10")
    e("v_permlane32_swap_b32 v10, v11")
    e("v_add_f32 v10, v10, v11")
    e(f"v_mov_b32 v11, {f32(1e-5)}")
    e(f"v_fmac_f32 v11, {f32(1.0/512)}, v10")
    e(f"v_rsq_f32 v{vRSTD}, v11")
    e("v_and_b32 v12, 31, v0")
    e("v_lshlrev_b32 v12, 2, v12")
    e(f"s_lshl_b32 s{sT0}, s{sWV}, 7")
    e(f"s_add_u32 s{sT0}, s{sT0}, {RSL}")
    e(f"v_add_u32 v12, s{sT0}, v12")
    e(f"v_mul_f32 v{vRSQ}, {f32(QSCALE)}, v{vRSTD}")
    e.ds(f"ds_write_b32 v12, v{vRSTD}", "rs")
    e(f"v_add_u32 v{vRSA}, s{sT0}, v{vBC}")
    e(f"s_lshl_b32 s{sRT}, s{sR}, 2")
    e(f"s_add_u32 s{sRT}, s{sRT}, s{sWV}")
    e(f"v_mov_b32 v{vZ}, 0")
    get_epoch(e, 13, vZ)
    e(f"v_mov_b32 v{vEP}, s{sEP}")


def epilogue_items(kind, acc, t, fidx, tile):
    sD0, sD1, sF0, sF1 = sP[3], sP[4], sP[5], sP[6]
    it = []
    if kind in "QK":
        sc = vRSQ if kind == "Q" else vRSTD
        sbase = sD0 if kind == "Q" else sD1
        for hh in range(2):
            tb = TA + 8 * hh
            pb = TP + 4 * hh
            for j in range(8):
                it.append(f"v_mul_f32 v{tb+j}, v{sc}, v{acc+8*hh+j}")
            for j in range(4):
                it.append(f"v_cvt_pk_bf16_f32 v{pb+j}, v{tb+2*j}, v{tb+2*j+1}")
            it.append(f"s_add_u32 s{sT0}, s{sbase}, {(2*t+hh) * 65536}")
            it.append(("vm", f"buffer_store_dwordx4 {vr(pb,4)}, v{vL16}, {sr(sWS,4)}, s{sT0} offen{ST}", ("st", tile)))
    elif kind == "V":
        for g in range(4):
            it.append(("ds", f"ds_read_b128 {vr(TA+4*g,4)}, v{vRSA} offset:{g*32}", ("ep", g)))
        for hh in range(2):
            pb = TP + 4 * hh
            it.append(("wds", ("ep", 2 * hh + 1)))
            for j in range(8):
                it.append(f"v_mul_f32 v{TA+8*hh+j}, v{TA+8*hh+j}, v{acc+8*hh+j}")
            for j in range(4):
                it.append(f"v_cvt_pk_bf16_f32 v{pb+j}, v{TA+8*hh+2*j}, v{TA+8*hh+2*j+1}")
            it.append(f"s_add_u32 s{sT0}, s{sD0}, {t * 131072 + hh * 1024}")
            it.append(("vm", f"buffer_store_dwordx4 {vr(pb,4)}, v{vL16}, {sr(sWS,4)}, s{sT0} offen{ST}", ("st", tile)))
    else:
        for g in range(4):
            it.append(("ds", f"ds_read_b128 {vr(TA+4*g,4)}, v{vBC} offset:{B1L - 131072 + (fidx*64 + t*32 + g*8) * 4}", ("ep", g)))
        for g in range(4):
            a = TA + 4 * g
            tt = TT + 4 * (g & 1)
            it.append(("wds", ("ep", g)))
            R = range(4)
            it += [f"v_fma_f32 v{a+j}, v{acc+4*g+j}, v{vRSTD}, v{a+j}" for j in R]
            it += [f"v_mul_f32 v{tt+j}, v{a+j}, v{a+j}" for j in R]
            it += [f"v_fmaak_f32 v{tt+j}, v{tt+j}, v{vC2}, {f32(GC1)}" for j in R]
            it += [f"v_mul_f32 v{tt+j}, v{tt+j}, v{a+j}" for j in R]
            it += [f"v_exp_f32 v{tt+j}, v{tt+j}" for j in R]
            it += [f"v_add_f32 v{tt+j}, 1.0, v{tt+j}" for j in R]
            it += [f"v_rcp_f32 v{tt+j}, v{tt+j}" for j in R]
            it += [f"v_mul_f32 v{a+j}, v{a+j}, v{tt+j}" for j in R]
            pb = TP + 2 * g
            it.append(f"v_cvt_pk_bf16_f32 v{pb}, v{a}, v{a+1}")
            it.append(f"v_cvt_pk_bf16_f32 v{pb+1}, v{a+2}, v{a+3}")
            if g & 1:
                hh = g >> 1
                it.append(f"s_add_u32 s{sT0}, s{sF1 if fidx else sF0}, {(2*t + hh) * 1024}")
                it.append(("vm", f"buffer_store_dwordx4 {vr(TP+4*hh,4)}, v{vL16}, {sr(sWS,4)}, s{sT0} offen{ST}", ("st", tile)))
    return it


def flag_items(sflag, off, tag="st"):
    return [("wvm", tag),
            ("vm", f"buffer_store_dword v{vEP}, v{vZ}, {sr(sWS,4)}, s{sflag} offen offset:{off}{ST}", "fl")]


def c_main(e, ty):
    T = jobs(ty)
    sRT = sP[2]
    sD0, sD1, sF0, sF1, sFQ, sFH = sP[3], sP[4], sP[5], sP[6], sP[7], sP[8]
    if ty == 0:
        e(f"s_lshl_b32 s{sD0}, s{sCI}, 18")
        e(f"s_lshl_b32 s{sT0}, s{sRT}, 10")
        e(f"s_add_u32 s{sD0}, s{sD0}, s{sT0}")
        e(f"s_add_u32 s{sD1}, s{sD0}, {KF}")
        e(f"s_mul_i32 s{sF0}, s{sRT}, {144*1024}")
        e(f"s_add_u32 s{sF0}, s{sF0}, {A2}")
        e(f"s_lshl_b32 s{sT0}, s{sCI}, 11")
        e(f"s_add_u32 s{sF1}, s{sF0}, s{sT0}")
        e(f"s_add_u32 s{sF1}, s{sF1}, {96*1024}")
        e(f"s_lshl_b32 s{sT0}, s{sCI}, 12")
        e(f"s_add_u32 s{sF0}, s{sF0}, s{sT0}")
    else:
        e(f"s_lshl_b32 s{sD0}, s{sCI}, 18")
        e(f"s_lshl_b32 s{sT0}, s{sRT}, 11")
        e(f"s_add_u32 s{sD0}, s{sD0}, s{sT0}")
        e(f"s_add_u32 s{sD0}, s{sD0}, {VF}")
        e(f"s_mul_i32 s{sF0}, s{sRT}, {144*1024}")
        e(f"s_add_u32 s{sF0}, s{sF0}, {A2 + 32*1024}")
        e(f"s_lshl_b32 s{sT0}, s{sCI}, 13")
        e(f"s_add_u32 s{sF0}, s{sF0}, s{sT0}")
        e(f"s_add_u32 s{sF1}, s{sF0}, 4096")
    e(f"s_lshl_b32 s{sFQ}, s{sRT}, 4")
    e(f"s_add_u32 s{sFQ}, s{sFQ}, s{sCI}")
    e(f"s_add_u32 s{sFQ}, s{sFQ}, {8*ty}")
    e(f"s_lshl_b32 s{sFH}, s{sFQ}, 3")
    e(f"s_lshl_b32 s{sFQ}, s{sFQ}, 2")
    e(f"s_add_u32 s{sFQ}, s{sFQ}, {FQ}")
    e(f"s_add_u32 s{sFH}, s{sFH}, {FH}")
    e(f"v_add_u32 v{vBC}, 0x20000, v{vBC}")
    nF = 32 * len(T)

    def reads(F):
        i, n = divmod(F, 32)
        kind, c0, t = T[i]
        q, s = divmod(n, 8)
        c = c0 + q
        it = []
        if s == 0:
            if (t == 0 and c <= 8) or (ty == 0 and i == 5 and q == 0):
                it.append("s_barrier")
            src = vTH if kind == "H" else (vT1 if t else vT0)
            it.append(f"v_add_u32 v{vADDR}, {chunk_addr(c)}, v{src}")
        b = WF0 + 4 * (F % NB)
        st, us = (1024, 256) if kind == "H" else (2048, 512)
        it.append(("ds", f"ds_read_b64_tr_b16 {vr(b,2)}, v{vADDR} offset:{s*st}", ("wf", F)))
        it.append(("ds", f"ds_read_b64_tr_b16 {vr(b+2,2)}, v{vADDR} offset:{s*st+us}", ("wf", F)))
        return it

    for F in range(PD):
        for it in reads(F):
            e.run(it)
    prev = None
    pend_flag = None
    for i, (kind, c0, t) in enumerate(T):
        acc = ACC1[i & 1]
        main = []
        for n in range(32):
            F = 32 * i + n
            g = []
            if n % 2 == 0:
                g.append(("wds", ("wf", F + 1)))
            b = WF0 + 4 * (F % NB)
            w, x = vr(b, 4), vr(X0 + 4 * n, 4)
            A, B = (x, w) if kind == "V" else (w, x)
            C = "0" if n == 0 else vr(acc, 16)
            g.append(f"v_mfma_f32_32x32x16_bf16 {vr(acc,16)}, {A}, {B}, {C}")
            if F + PD < nF:
                g += reads(F + PD)
            if n == 20 and pend_flag:
                g += pend_flag
                pend_flag = None
            main.append(g)
        fill = epilogue_items(*prev) if prev else []
        interleave(e, main, fill, None, start=3)
        if prev and prev[2] == 1:
            if prev[0] in "KV":
                pend_flag = flag_items(sFQ, 0, ("st", prev[4]))
            elif prev[0] == "F":
                pend_flag = flag_items(sFH, 4 * prev[3], ("st", prev[4]))
        fidx = 0
        if kind in "FH":
            fidx = 0 if c0 == (8 if ty == 0 else 4) else 1
        prev = (kind, acc, t, fidx, i)
    fin = epilogue_items(*prev)
    if pend_flag:
        fin = fin + pend_flag
    for it in fin:
        e.run(it)


def attn_consts(e):
    e("v_and_b32 v2, 31, v0")
    e("v_lshrrev_b32 v3, 5, v0")
    e("v_lshlrev_b32 v4, 2, v3")
    e("v_sub_u32 v4, v2, v4")
    for r in range(16):
        e(f"v_cmp_le_i32 {sr(sMASK+2*r,2)}, {8*(r>>2) + (r&3)}, v4")
    e("v_mov_b32 v5, 0xffff")
    e("v_mov_b32 v6, 0xffff0000")
    for p in range(8):
        e(f"v_cndmask_b32 v{MK+p}, 0, v5, {sr(sMASK+4*p,2)}")
        e(f"v_cndmask_b32 v7, 0, v6, {sr(sMASK+4*p+2,2)}")
        e(f"v_or_b32 v{MK+p}, v{MK+p}, v7")


def attn_setup(e):
    sHD, sT0q, sKT, sKB, sQB, sVB, sOB, sFO = sP[0], sP[1], sP[2], sP[3], sP[4], sP[5], sP[6], sP[7]
    e(f"s_lshl_b32 s{sHD}, s{sG}, 2")
    e(f"s_add_u32 s{sHD}, s{sHD}, s{sWV}")
    e(f"s_lshl_b32 s{sT0q}, s{sRB}, 1")
    e(f"s_sub_u32 s{sKT}, s{sT0q}, 8")
    e(f"s_lshl_b32 s{sKB}, s{sHD}, 16")
    e(f"s_lshl_b32 s{sQB}, s{sT0q}, 10")
    e(f"s_add_u32 s{sQB}, s{sQB}, s{sKB}")
    e(f"s_add_u32 s{sKB}, s{sKB}, {KF}")
    e(f"s_lshr_b32 s{sVB}, s{sHD}, 1")
    e(f"s_lshl_b32 s{sVB}, s{sVB}, 17")
    e(f"s_add_u32 s{sVB}, s{sVB}, {VF}")
    e(f"s_mul_i32 s{sOB}, s{sT0q}, {144*1024}")
    e(f"s_lshl_b32 s{sT0}, s{sHD}, 10")
    e(f"s_add_u32 s{sOB}, s{sOB}, s{sT0}")
    e(f"s_add_u32 s{sOB}, s{sOB}, {A2 + 112*1024}")
    e(f"s_lshl_b32 s{sFO}, s{sRB}, 5")
    e(f"s_add_u32 s{sFO}, s{sFO}, s{sHD}")
    e(f"s_lshl_b32 s{sFO}, s{sFO}, 2")
    e(f"s_add_u32 s{sFO}, s{sFO}, {FO}")
    for j in range(10):
        e(f"s_cmp_ge_i32 s{sKT}, {-j}")
        e(f"s_cselect_b32 s{sT0}, 0x3f803f80, 0")
        for k in range(8):
            e(f"v_mov_b32 v{VR+8*j+k}, s{sT0}")
    e("v_min_u32 v2, 19, v0")
    e("v_lshrrev_b32 v3, 1, v2")
    e(f"v_add_u32 v3, s{sKT}, v3")
    e("v_max_i32 v3, 0, v3")
    e("v_and_b32 v2, 1, v2")
    e("v_lshlrev_b32 v2, 3, v2")
    e("v_lshl_add_u32 v2, v3, 4, v2")
    e(f"v_add_u32 v2, s{sG}, v2")
    e("v_lshlrev_b32 v2, 2, v2")
    e(f"v_add_u32 v13, {FQ}, v2")


def attn_loads(e):
    sHD, sT0q, sKT, sKB, sQB, sVB, sOB, sFO = sP[0], sP[1], sP[2], sP[3], sP[4], sP[5], sP[6], sP[7]
    e.vmem(f"buffer_load_dwordx4 {vr(QR,4)}, v{vL16}, {sr(sWS,4)}, s{sQB} offen{LD}", "q")
    e.vmem(f"buffer_load_dwordx4 {vr(QR+4,4)}, v{vL16}, {sr(sWS,4)}, s{sQB} offen offset:1024{LD}", "q")
    e("v_lshrrev_b32 v3, 5, v0")
    e("v_lshlrev_b32 v8, 9, v3")
    e(f"s_lshl_b32 s{sT0}, s{sKT}, 10")
    e(f"v_add_u32 v9, s{sT0}, v{vL16}")
    order = [0, 8, 1, 2, 3, 4, 5, 6, 7, 9]
    tmps = [2, 3, 4, 5]
    for n, j in enumerate(order):
        t = tmps[n & 3]
        e(f"v_add_u32 v{t}, {1024*j}, v9")
        e(f"v_max_i32 v{t}, v{t}, v8")
        e.vmem(f"buffer_load_dwordx4 {vr(KR+4*j,4)}, v{t}, {sr(sWS,4)}, s{sKB} offen{LD}", ("k", j))
    e(f"s_and_b32 s{sT1}, s{sHD}, 1")
    e(f"s_lshl_b32 s{sT1}, s{sT1}, 8")
    e(f"s_lshl_b32 s{sT0}, s{sKT}, 11")
    e(f"s_add_u32 s{sT0}, s{sT0}, s{sT1}")
    e(f"v_add_u32 v9, s{sT0}, v{vL16}")
    e("s_mov_b32 exec_lo, 0xffff")
    e("s_mov_b32 exec_hi, 0xffff")
    for n, j in enumerate(order):
        t = tmps[n & 3]
        e(f"v_add_u32 v{t}, {2048*j}, v9")
        e.vmem(f"buffer_load_dwordx4 {vr(VR+8*j,4)}, v{t}, {sr(sWS,4)}, s{sVB} offen{LD}", ("v", j))
        e.vmem(f"buffer_load_dwordx4 {vr(VR+8*j+4,4)}, v{t}, {sr(sWS,4)}, s{sVB} offen offset:1024{LD}", ("v", j))
    e("s_mov_b64 exec, -1")


def mf(d, a, b, c):
    return f"v_mfma_f32_32x32x16_bf16 {vr(d,16)}, {vr(a,4)}, {vr(b,4)}, {c if isinstance(c,str) else vr(c,16)}"


def attn_compute(e):
    sOB, sFO = sP[6], sP[7]
    for u in range(2):
        q = QR + 4 * u
        j0, j8 = u, u + 8
        mids = list(range(u + 1, u + 8))
        bufs = [SB[0], SB[1], SB[2], NM, OA]
        e.wait(vm=("k", 8 if u == 0 else 9))
        e(mf(bufs[0], KR + 4 * j0, q, "0"))
        e(mf(bufs[1], KR + 4 * j8, q, "0"))
        seq = []

        def issue(n):
            j = mids[n]
            e.wait(vm=("k", j))
            b = bufs[(2 + n) % 5]
            e(mf(b, KR + 4 * j, q, "0"))
            seq.append(b)
        issue(0)
        issue(1)
        issue(2)
        for r in range(16):
            e(f"v_cndmask_b32 v{bufs[0]+r}, v{bufs[0]+r}, v{bufs[1]+r}, {sr(sMASK+2*r,2)}")
        b = bufs[0]
        e(f"v_max3_f32 v2, v{b}, v{b+1}, v{b+2}")
        e(f"v_max3_f32 v3, v{b+3}, v{b+4}, v{b+5}")
        for r in range(6, 16, 4):
            e(f"v_max3_f32 v2, v2, v{b+r}, v{b+r+1}")
            if r + 3 < 16:
                e(f"v_max3_f32 v3, v3, v{b+r+2}, v{b+r+3}")
        for n in range(7):
            if n + 3 < 7:
                issue(n + 3)
            b = seq[n]
            for r in range(0, 16, 4):
                e(f"v_max3_f32 v2, v2, v{b+r}, v{b+r+1}")
                e(f"v_max3_f32 v3, v3, v{b+r+2}, v{b+r+3}")
        e("v_max_f32 v2, v2, v3")
        e("v_mov_b32 v3, v2")
        e("v_permlane32_swap_b32 v2, v3")
        e("v_max_f32 v2, v2, v3")
        for r in range(16):
            e(f"v_sub_f32 v{NM+r}, 0, v2")
        e(mf(SB[0], KR + 4 * j0, q, NM))
        e(mf(SB[1], KR + 4 * j8, q, NM))
        e(mf(SB[2], KR + 4 * mids[0], q, NM))
        for r in range(16):
            e(f"v_cndmask_b32 v{SB[0]+r}, v{SB[0]+r}, v{SB[1]+r}, {sr(sMASK+2*r,2)}")
        e(mf(SB[1], KR + 4 * mids[1], q, NM))
        for r in range(16):
            e(f"v_exp_f32 v{SB[0]+r}, v{SB[0]+r}")
        for p in range(8):
            e(f"v_cvt_pk_bf16_f32 v{PB[1]+p}, v{SB[0]+2*p}, v{SB[0]+2*p+1}")
        e(mf(SB[0], KR + 4 * mids[2], q, NM))
        for p in range(8):
            e(f"v_and_b32 v{PB[0]+p}, v{MK+p}, v{PB[1]+p}")
        for p in range(8):
            e(f"v_bfi_b32 v{PB[1]+p}, v{MK+p}, 0, v{PB[1]+p}")
        e.wait(vm=("v", 8 if u == 0 else 9))
        e(mf(OA, VR + 8 * j8, PB[0], "0"))
        e(mf(OA, VR + 8 * j8 + 4, PB[0] + 4, OA))
        e(mf(OA, VR + 8 * j0, PB[1], OA))
        e(mf(OA, VR + 8 * j0 + 4, PB[1] + 4, OA))
        order = [SB[2], SB[1], SB[0]]
        for n in range(7):
            b = order[n % 3]
            pb = PB[n & 1]
            for r in range(16):
                e(f"v_exp_f32 v{b+r}, v{b+r}")
            for p in range(8):
                e(f"v_cvt_pk_bf16_f32 v{pb+p}, v{b+2*p}, v{b+2*p+1}")
            if n + 3 < 7:
                e(mf(b, KR + 4 * mids[n + 3], q, NM))
            e.wait(vm=("v", mids[n]))
            e(mf(OA, VR + 8 * mids[n], pb, OA))
            e(mf(OA, VR + 8 * mids[n] + 4, pb + 4, OA))
        e(f"v_rcp_f32 v2, v{OA+8}")
        for r in range(8):
            e(f"v_mul_f32 v{SB[0]+r}, v2, v{OA+r}")
        for p in range(4):
            e(f"v_cvt_pk_bf16_f32 v{4+p}, v{SB[0]+2*p}, v{SB[0]+2*p+1}")
        if u:
            e(f"s_add_u32 s{sOB}, s{sOB}, {144*1024}")
        e.vmem(f"buffer_store_dwordx4 v[4:7], v{vL16}, {sr(sWS,4)}, s{sOB} offen{ST}", "st")
    for it in flag_items(sFO, 0):
        e.run(it)


def c_attn(e):
    sFH = sP[8]
    attn_setup(e)
    attn_consts(e)
    e("s_waitcnt vmcnt(0)")
    e(f"buffer_store_dword v{vEP}, v{vZ}, {sr(sWS,4)}, s{sFH} offen offset:4{ST}")
    e.vm = []
    stamp_mid(e, 1)
    poll(e, 13, 14)
    attn_loads(e)
    attn_compute(e)


def ksteps(jw_sym=False):
    L = []
    for c in range(2):
        L += [(0, 8 * c + i) for i in range(4)]
    L += [(1, i) for i in range(8)]
    for c in range(2):
        L += [(2, 8 * c + 4 + i) for i in range(4)]
    L += [(3, i) for i in range(4)]
    L += [(4, i) for i in range(8)]
    return L


KBASE = {0: 32, 1: 0, 2: 32, 3: 96, 4: 112}
KSTR = {0: 16, 1: 8, 2: 16, 3: 4, 4: 8}


def l_setup(e):
    sJW = sP[0]
    srd(e, sWQ, 70, 71, 512 * 3072)
    srd(e, sW1, 76, 77, 512 * 3584)
    srd(e, sB1, 78, 79, 1792 * 2)
    srd(e, sW2, 80, 81, 1792 * 1024)
    srd(e, sWO, 72, 73, 512 * 1024)
    srd(e, sB2, 82, 83, 1024)
    srd(e, sOUT, 84, 85, 2048 * 1024)
    e(f"s_sub_u32 s{sJW}, s{sWV}, 4")
    e("v_lshrrev_b32 v5, 3, v0")
    e("v_and_b32 v6, 7, v0")
    e("v_bfe_u32 v7, v0, 4, 1")
    e("v_lshlrev_b32 v7, 2, v7")
    e("v_xor_b32 v6, v6, v7")
    e("v_lshlrev_b32 v6, 4, v6")
    e("v_mul_u32_u24 v2, 3072, v5")
    e("v_add_u32 v2, v2, v6")
    e("v_mul_u32_u24 v3, 3584, v5")
    e("v_add_u32 v3, v3, v6")
    e("v_lshrrev_b32 v5, 2, v0")
    e("v_and_b32 v6, 3, v0")
    e("v_lshlrev_b32 v6, 4, v6")
    e("v_mul_u32_u24 v4, 3584, v5")
    e("v_add_u32 v4, v4, v6")
    e("v_and_b32 v5, 31, v0")
    e("v_lshrrev_b32 v6, 5, v0")
    e("v_lshlrev_b32 v5, 2, v5")
    e("v_lshl_add_u32 v8, v6, 12, v5")
    e("v_add_u32 v9, 0x2000, v8")
    e(f"v_mov_b32 v{vZ}, 0")
    e(f"s_lshl_b32 s{sT0}, s{sG}, 7")
    e(f"s_mul_i32 s{sT1}, s{sRB}, {2*144*1024}")
    e(f"s_add_u32 s{sT1}, s{sT1}, {A2}")
    for cls in range(5):
        kb = KBASE[cls] if cls < 4 else 0
        e(f"s_mul_i32 s{sT2}, s{sJW}, {KSTR[cls]*16*1024}")
        e(f"s_add_u32 s{90+cls}, s{sT2}, s{sT0}")
        e(f"s_add_u32 s{90+cls}, s{90+cls}, {kb*16*1024}")
        e(f"s_mul_i32 s{sT2}, s{sJW}, {KSTR[cls]*1024}")
        e(f"s_add_u32 s{95+cls}, s{sT2}, s{sT1}")
        e(f"s_add_u32 s{95+cls}, s{95+cls}, {KBASE[cls]*1024}")


def ldB(e, n):
    cls, off = ksteps()[n]
    base = BR + 8 * (n % NBR)
    e(f"s_add_u32 s{sT0}, s{90+cls}, {off*16*1024}")
    for i in range(8):
        kp, odd = i >> 1, i & 1
        dst = base + kp + 4 * odd
        va = 9 if i >= 4 else 8
        e.vmem(f"buffer_load_dword v{dst}, v{va}, {sr(sWO if cls == 4 else sW2,4)}, s{sT0} offen offset:{(i&3)*1024}", ("b", n))


def epoch_scan(e):
    S = newlabel("scan_skip")
    e(f"s_or_b32 s{sT0}, s2, s{sP[0]}")
    e(f"s_cmp_lg_u32 s{sT0}, 0")
    e(f"s_cbranch_scc1 {S}")
    e(f"s_mov_b32 s{sT1}, {FLG}")
    for i in range(16):
        e(f"buffer_load_dwordx4 {vr(16+4*i,4)}, v{vL16}, {sr(sWS,4)}, s{sT1} offen sc1")
        e(f"s_add_u32 s{sT1}, s{sT1}, 1024")
    e("s_waitcnt vmcnt(0)")
    e(f"v_readfirstlane_b32 s{sT2}, v16")
    L = newlabel("scan")
    e.label(L)
    e(f"s_add_u32 s{sT2}, s{sT2}, 1")
    e(f"s_cmp_eq_u32 s{sT2}, 0")
    e(f"s_cbranch_scc1 {L}")
    e("s_mov_b64 s[100:101], 0")
    for i in range(64):
        e(f"v_cmp_eq_u32 vcc, s{sT2}, v{16+i}")
        e("s_nop 1")
        e("s_or_b64 s[100:101], s[100:101], vcc")
    e("s_cmp_lg_u64 s[100:101], 0")
    e(f"s_cbranch_scc1 {L}")
    e(f"v_mov_b32 v16, s{sT2}")
    e(f"buffer_store_dword v16, v{vZ}, {sr(sDBG,4)}, 0 offen sc1")
    e.label(S)


def l_phase1(e, ty):
    sJW = sP[0]
    sGQ, sG1, sL4, sL2 = sP[1], sP[2], sP[3], sP[4]
    sJ = sP[5:9]
    sBa, sBb = sP[9], sP[10]
    e(f"s_mul_i32 s{sGQ}, s{sJW}, {32*3072}")
    e(f"s_mul_i32 s{sG1}, s{sJW}, {32*3584}")
    e(f"s_lshl_b32 s{sL4}, s{sJW}, 12")
    e(f"s_lshl_b32 s{sL2}, s{sJW}, 11")
    if ty == 0:
        ch = [(sWQ, 3072, sJ[0], False)] * 4 + [(sWQ, 3072, sJ[1], False)] * 4 + [(sW1, 3584, sJ[2], False)] * 4 + [(sW1, 3584, sJ[3], True)] * 4
        e(f"s_lshl_b32 s{sBa}, s{sCI}, 7")
        e(f"s_add_u32 s{sJ[0]}, s{sGQ}, s{sBa}")
        e(f"s_add_u32 s{sJ[1]}, s{sJ[0]}, 1024")
        e(f"s_add_u32 s{sJ[2]}, s{sG1}, s{sBa}")
        e(f"s_lshl_b32 s{sBb}, s{sCI}, 6")
        e(f"s_add_u32 s{sBb}, s{sBb}, 3072")
        e(f"s_add_u32 s{sJ[3]}, s{sG1}, s{sBb}")
    else:
        ch = [(sWQ, 3072, sJ[0], False)] * 4 + [(sW1, 3584, sJ[1], False)] * 4 + [(sW1, 3584, sJ[2], False)] * 4
        e(f"s_lshl_b32 s{sT0}, s{sCI}, 7")
        e(f"s_add_u32 s{sJ[0]}, s{sGQ}, s{sT0}")
        e(f"s_add_u32 s{sJ[0]}, s{sJ[0]}, 2048")
        e(f"s_lshl_b32 s{sBa}, s{sCI}, 8")
        e(f"s_add_u32 s{sBa}, s{sBa}, 1024")
        e(f"s_add_u32 s{sBb}, s{sBa}, 128")
        e(f"s_add_u32 s{sJ[1]}, s{sG1}, s{sBa}")
        e(f"s_add_u32 s{sJ[2]}, s{sJ[1]}, 128")

    def dma(c):
        srdb, ldw, sj, half = ch[c]
        q = c & 3
        la = chunk_addr(c)
        if not half:
            voff = 2 if ldw == 3072 else 3
            for u in range(4):
                e(f"s_add_u32 m0, s{sL4}, {la + u*1024}")
                e(f"s_add_u32 s{sT0}, s{sj}, {(128*q + 8*u) * ldw}")
                e.vmem(f"buffer_load_dwordx4 v{voff}, {sr(srdb,4)}, s{sT0} offen lds", ("c", c))
        else:
            for u in range(2):
                e(f"s_add_u32 m0, s{sL2}, {la + u*1024}")
                e(f"s_add_u32 s{sT0}, s{sj}, {(128*q + 16*u) * ldw}")
                e.vmem(f"buffer_load_dwordx4 v4, {sr(srdb,4)}, s{sT0} offen lds", ("c", c))

    dma(0)
    e("v_lshlrev_b32 v5, 1, v0")
    e.vmem(f"buffer_load_ushort v6, v5, {sr(sB1,4)}, s{sBa} offen", "b1")
    e.vmem(f"buffer_load_ushort v7, v5, {sr(sB1,4)}, s{sBb} offen", "b1")
    e("v_lshlrev_b32 v5, 2, v0")
    e(f"v_add_u32 v5, {B1L}, v5")
    e.wait(vm="b1")
    e("v_lshlrev_b32 v6, 16, v6")
    e("v_lshlrev_b32 v7, 16, v7")
    e.ds("ds_write_b32 v5, v6", "b1")
    e.ds("ds_write_b32 v5, v7 offset:256", "b1")
    epoch_scan(e)
    e.wait(ds="*")
    e("s_barrier")
    n = len(ch)
    for c in range(1, 9):
        dma(c)
    nb = 0
    sched = {0: 2, 1: 2, 2: 2, 3: 1, 4: 1, 5: 1, 6: 2, 7: 2, 8: 2}
    for k in range(9):
        e.wait(vm=("c", k if k < 8 else min(n - 1, 13)))
        e("s_barrier")
        nxt = {4: (9, 10, 11), 5: (12, 13), 8: (14, 15)}.get(k, ())
        for c in nxt:
            if c < n:
                dma(c)
        for _ in range(sched[k]):
            ldB(e, nb)
            nb += 1
    assert nb == NBR
    if ty == 0:
        e.wait(vm=("c", 15))
        e("s_barrier")


def l_gemm2(e):
    sJW = sP[0]
    KS = ksteps()
    NK = len(KS)
    get_epoch(e, 13, vZ)
    e("v_and_b32 v5, 15, v0")
    e("v_lshrrev_b32 v6, 3, v5")
    e("v_bfe_u32 v7, v5, 2, 1")
    e("v_and_b32 v5, 3, v5")
    e("v_lshl_add_u32 v5, v7, 4, v5")
    e("v_lshl_add_u32 v5, v6, 5, v5")
    e(f"s_lshl_b32 s{sT0}, s{sRB}, 6")
    e(f"s_lshl_b32 s{sT1}, s{sJW}, 2")
    e(f"s_add_u32 s{sT0}, s{sT0}, s{sT1}")
    e(f"v_add_u32 v5, s{sT0}, v5")
    e("v_lshlrev_b32 v5, 2, v5")
    e(f"v_add_u32 v14, {FH}, v5")
    e("v_and_b32 v5, 7, v0")
    e(f"s_lshl_b32 s{sT0}, s{sRB}, 5")
    e(f"s_lshl_b32 s{sT1}, s{sJW}, 3")
    e(f"s_add_u32 s{sT0}, s{sT0}, s{sT1}")
    e(f"v_add_u32 v5, s{sT0}, v5")
    e("v_lshlrev_b32 v5, 2, v5")
    e(f"v_add_u32 v15, {FO}, v5")
    e("v_mov_b32 v2, 0x05040100")
    e("v_mov_b32 v3, 0x07060302")
    def lanes(ty, blk):
        return sum(1 << (rt * 8 + ty * 4 + c * 2 + blk) for rt in range(2) for c in range(2))
    PM = {0: lanes(1, 0), 1: lanes(0, 0), 2: lanes(1, 1), 3: lanes(0, 1)}

    def prepoll(cls):
        e.vmem(f"buffer_load_dword v13, v{14 if cls < 4 else 15}, {sr(sWS,4)}, 0 offen sc1", "pf")

    def check(cls):
        OK = newlabel("ok")
        e.wait(vm="pf")
        e(f"v_cmp_ne_u32 vcc, s{sEP}, v13")
        e("s_nop 1")
        e(f"s_and_b32 s{sT1}, vcc_lo, {PM[cls] if cls < 4 else 0xff}")
        e(f"s_cmp_eq_u32 s{sT1}, 0")
        e(f"s_cbranch_scc1 {OK}")
        sv = list(e.vm)
        poll(e, 14 if cls < 4 else 15, 13, PM[cls] if cls < 4 else 0xff)
        e.vm = sv
        e.label(OK)

    def ldA(n):
        cls, off = KS[n]
        if n == 0:
            poll(e, 14, 13, PM[cls])
        elif KS[n - 1][0] != cls:
            check(cls)
        if n + 2 < NK and KS[n + 2][0] != KS[n + 1][0]:
            prepoll(KS[n + 2][0])
        for rt in range(2):
            e(f"s_add_u32 s{sT0}, s{95+cls}, {off*1024 + rt*144*1024}")
            e.vmem(f"buffer_load_dwordx4 {vr(AF + 8*(n % DA) + 4*rt, 4)}, v{vL16}, {sr(sWS,4)}, s{sT0} offen{LD}", ("a", n))

    def perm(n):
        rb_ = BR + 8 * (n % NBR)
        wb = BW + 8 * (n & 1)
        e.wait(vm=("b", n))
        for kp in range(4):
            e(f"v_perm_b32 v{wb+kp}, v{rb_+4+kp}, v{rb_+kp}, v2")
            e(f"v_perm_b32 v{wb+4+kp}, v{rb_+4+kp}, v{rb_+kp}, v3")

    for n in range(DA):
        ldA(n)
    perm(0)
    for n in range(NK):
        if n + NBR < NK:
            ldB(e, n + NBR)
        e.wait(vm=("a", n))
        bb = BW + 8 * (n & 1)
        ab = AF + 8 * (n % DA)
        k = 0
        for rt in range(2):
            for nt in range(2):
                acc = ACC2 + 16 * (2 * rt + nt)
                c = "0" if n == 0 else vr(acc, 16)
                e(f"v_mfma_f32_32x32x16_bf16 {vr(acc,16)}, {vr(bb+4*nt,4)}, {vr(ab+4*rt,4)}, {c}")
                k += 1
                if k == 1 and n + 1 < NK:
                    perm(n + 1)
        if n + DA < NK:
            ldA(n + DA)


def l_final(e):
    sJW = sP[0]
    sTB, sCB = sP[1], sP[2]
    e(f"s_lshl_b32 s{sT0}, s{sJW}, 3")
    e("v_lshrrev_b32 v160, 3, v0")
    e(f"v_add_u32 v160, s{sT0}, v160")
    e("v_and_b32 v161, 7, v0")
    e("v_lshlrev_b32 v162, 4, v161")
    e("v_lshl_add_u32 v163, v160, 10, v162")
    e(f"s_lshl_b32 s{sTB}, s{sRB}, 16")
    e(f"s_lshl_b32 s{sCB}, s{sG}, 7")
    e(f"s_add_u32 s{sTB}, s{sTB}, s{sCB}")
    e.vmem(f"buffer_load_dwordx4 v[164:167], v162, {sr(sB2,4)}, s{sCB} offen", "b2")
    for it in range(2):
        e(f"s_add_u32 s{sT0}, s{sTB}, {it*32*1024}")
        e.vmem(f"buffer_load_dwordx4 {vr(168+4*it,4)}, v163, {sr(sX,4)}, s{sT0} offen", "xr")
    e("s_barrier")
    e(f"s_mul_i32 s{sT0}, s{sJW}, {SS}")
    e(f"v_add_u32 v5, s{sT0}, v{vL16}")
    for q in range(4):
        for g in range(4):
            e.ds(f"ds_write_b128 v5, {vr(ACC2 + 16*q + 4*g, 4)} offset:{q*QS + g*GS}", "rw")
    e("v_lshlrev_b32 v176, 4, v160")
    e("v_lshrrev_b32 v177, 1, v161")
    e(f"v_mul_u32_u24 v177, {GS}, v177")
    e("v_add_u32 v176, v176, v177")
    e("v_and_b32 v177, 1, v161")
    e("v_lshl_add_u32 v176, v177, 9, v176")
    e.wait(ds="*")
    e("s_barrier")
    R = 16
    for it in range(2):
        for src in range(4):
            for nt in range(2):
                e.ds(f"ds_read_b128 {vr(R + 32*it + 8*src + 4*nt, 4)}, v176 offset:{src*SS + (2*it+nt)*QS}", ("fr", it))
    e.wait(vm="xr")
    for p in range(4):
        e(f"v_lshlrev_b32 v{180+p}, 16, v{164+p}")
        e(f"v_and_b32 v{184+p}, 0xffff0000, v{164+p}")
    for it in range(2):
        xb = 168 + 4 * it
        for p in range(4):
            e(f"v_lshlrev_b32 v{188+p}, 16, v{xb+p}")
            e(f"v_and_b32 v{192+p}, 0xffff0000, v{xb+p}")
        for j in range(8):
            e(f"v_add_f32 v{188+j}, v{188+j}, v{180+j}")
        e.wait(ds=("fr", it))
        b = R + 32 * it
        for j in range(8):
            e(f"v_add_f32 v{b+j}, v{b+j}, v{b+8+j}")
            e(f"v_add_f32 v{b+16+j}, v{b+16+j}, v{b+24+j}")
        for j in range(8):
            e(f"v_add_f32 v{b+j}, v{b+j}, v{b+16+j}")
        for j in range(8):
            e(f"v_add_f32 v{b+j}, v{b+j}, v{188+j}")
        for p in range(4):
            e(f"v_cvt_pk_bf16_f32 v{b+8+p}, v{b+p}, v{b+4+p}")
        e(f"s_add_u32 s{sT0}, s{sTB}, {it*32*1024}")
        e.vmem(f"buffer_store_dwordx4 {vr(b+8,4)}, v163, {sr(sOUT,4)}, s{sT0} offen", "st")


def gen(name):
    e = Emit()
    stamp_begin(e)
    prologue(e)
    c_load_ln(e)
    e(f"s_cmp_eq_u32 s{sTY}, 1")
    e("s_cbranch_scc1 L_cB")
    sv = (list(e.lgkm), list(e.vm))
    c_main(e, 0)
    e("s_branch L_attn")
    e.label("L_cB")
    e.lgkm, e.vm = list(sv[0]), list(sv[1])
    e("s_nop 4")
    c_main(e, 1)
    e.label("L_attn")
    e("s_nop 4")
    e("s_waitcnt lgkmcnt(0)")
    e.lgkm = []
    c_attn(e)
    stamp_end(e, 0, sWV, sWS)
    e("s_endpgm")
    e.label("L_loader")
    e.lgkm, e.vm = [], []
    l_setup(e)
    e(f"s_cmp_eq_u32 s{sTY}, 1")
    e("s_cbranch_scc1 L_lB")
    l_phase1(e, 0)
    e("s_branch L_g2")
    e.label("L_lB")
    e.lgkm, e.vm = [], []
    l_phase1(e, 1)
    e.label("L_g2")
    e("s_nop 4")
    stamp_mid(e, 0)
    l_gemm2(e)
    stamp_mid(e, 1)
    l_final(e)
    stamp_end(e, 0, sWV, sWS)
    e.label("L_end")
    e("s_endpgm")
    return khead(name) + e.text(), kd(name, 248)


if __name__ == "__main__":
    import sys
    if "--stamp" in sys.argv:
        common.STAMP = True
        sys.argv.remove("--stamp")
    ref = open(f"cdna_kernels/{NAME}.s.ref").read().split("\n")
    hdr = [l for l in ref if l.startswith(";") and "@launch" not in l]
    hdr.append(f"; @launch grid=(256,1,1) block=(512,1,1) lds={LDS_TOTAL}")
    body, desc = gen(NAME + "_kernel")
    out = "\n".join(hdr) + "\n" + '.amdgcn_target "amdgcn-amd-amdhsa--gfx950"\n' + body + desc
    dst = sys.argv[1] if len(sys.argv) > 1 else f"cdna_kernels/{NAME}.s"
    open(dst, "w").write(out)
    print("wrote", dst, len(out), "bytes")
```

```python
import math, struct

NAME = "parallel_sum__sliding_block__dense_activation_gelu__prompt"

MB = 1 << 20
QF = 0
KF = 2 * MB
VF = 4 * MB
A2 = 6 * MB
FLG = 15 * MB
WS_USED = 16 * MB

LOG2E = math.log2(math.e)
K0 = math.sqrt(2.0 / math.pi)
GC1 = -2.0 * K0 * LOG2E
GC2 = GC1 * 0.044715
QSCALE = LOG2E * 0.25


def f32(x):
    return "0x%08x" % struct.unpack("<I", struct.pack("<f", x))[0]


def vr(b, n):
    return f"v[{b}:{b+n-1}]"


def sr(b, n):
    return f"s[{b}:{b+n-1}]"


def kd(name, vgpr, sgpr=102, accum=None):
    if globals()["STAMP"]:
        vgpr = 256
    if accum is None:
        accum = (vgpr + 3) // 4 * 4
    return f""".section .rodata,"a"
.p2align 6
.amdhsa_kernel {name}
  .amdhsa_next_free_vgpr {vgpr}
  .amdhsa_next_free_sgpr {sgpr}
  .amdhsa_accum_offset {accum}
  .amdhsa_group_segment_fixed_size 0
  .amdhsa_kernarg_size 88
  .amdhsa_user_sgpr_count 2
  .amdhsa_user_sgpr_kernarg_segment_ptr 1
  .amdhsa_system_sgpr_workgroup_id_x 1
.end_amdhsa_kernel
"""


def khead(name):
    return f""".text
.globl {name}
.p2align 8
.type {name},@function
{name}:
"""


def srd(e, d, lo, hi, nbytes):
    e(f"s_mov_b32 s{d}, s{lo}")
    e(f"s_and_b32 s{d+1}, s{hi}, 0xffff")
    e(f"s_mov_b32 s{d+2}, {nbytes}")
    e(f"s_mov_b32 s{d+3}, 0x20000")


def interleave(e, main, fill, slots, start=0):
    from emit import cost
    total = sum(cost(f) for f in fill)
    n = len(main) - start
    fi = 0
    done = 0
    for gi, g in enumerate(main):
        for it in g:
            e.run(it)
        if gi >= start and n > 0:
            target = total * (gi - start + 1) / n
            if slots is not None:
                target = max(target, 0)
            while fi < len(fill) and done + cost(fill[fi]) <= target + 0.5:
                e.run(fill[fi])
                done += cost(fill[fi])
                fi += 1
    while fi < len(fill):
        e.run(fill[fi])
        fi += 1


STAMP = False
STAMP_OFF = 15 * MB + 512 * 1024


def _stamp(e, idx):
    e("s_waitcnt lgkmcnt(0)")
    e("s_memrealtime s[100:101]")
    e("s_waitcnt lgkmcnt(0)")
    e(f"v_mov_b32 v{248+idx}, s100")
    e.lgkm = []


def stamp_begin(e):
    if globals()["STAMP"]:
        _stamp(e, 0)
        for i in range(2, 8):
            e(f"v_mov_b32 v{248+i}, 0")


def stamp_mid(e, idx):
    if globals()["STAMP"]:
        _stamp(e, 2 + idx)


def stamp_end(e, kidx, swave, sws):
    if globals()["STAMP"]:
        e("s_waitcnt vmcnt(0)")
        _stamp(e, 1)
        e("s_lshl_b32 s100, s2, 3")
        e(f"s_add_u32 s100, s100, s{swave}")
        e("s_lshl_b32 s100, s100, 5")
        e(f"s_add_u32 s100, s100, {STAMP_OFF + kidx * 256 * 8 * 32}")
        e("v_mov_b32 v8, 0")
        e("s_mov_b64 exec, 1")
        e(f"buffer_store_dwordx4 v[248:251], v8, s[{sws}:{sws+3}], s100 offen")
        e(f"buffer_store_dwordx4 v[252:255], v8, s[{sws}:{sws+3}], s100 offen offset:16")
        if globals().get("DBGSRD"):
            d = globals()["DBGSRD"]
            e("v_not_b32 v9, v248")
            e(f"buffer_atomic_umax v9, v8, s[{d}:{d+3}], 0 offen offset:16")
            e(f"buffer_atomic_umax v249, v8, s[{d}:{d+3}], 0 offen offset:20")
            e(f"buffer_atomic_umax v250, v8, s[{d}:{d+3}], 0 offen offset:24")
            e(f"buffer_atomic_umax v248, v8, s[{d}:{d+3}], 0 offen offset:28")
```

```python
from emit import Emit
from common import *
import common

SLOT = 16384
NSLOT = 9
MISC = NSLOT * SLOT
B1L = MISC
RSL = MISC + 1024
LDS_TOTAL = MISC + 2048

FQ = FLG
FH = FLG + 4096
FO = FLG + 12288
NFLAGB = 16384

ST = " sc1"
LD = " sc1"
SPIN_MAX = 1 << 22

sX, sWS, sDBG, sWQ, sW1, sB1, sW2, sWO, sB2, sOUT = 28, 32, 36, 40, 44, 48, 52, 56, 60, 64
sR, sCI, sTY, sWV, sRB, sG, sEP = 4, 5, 6, 7, 8, 9, 10
sT0, sT1, sT2, sT3 = 11, 12, 13, 14
sP = list(range(15, 28))
sMASK = 64

X0 = 16
ACC1 = (144, 160)
WF0 = 176
NB, PD = 6, 5
TA, TT, TP = 200, 216, 224
vL16 = 1
vT0, vT1, vTH, vADDR = 2, 3, 4, 5
vRSTD, vRSQ, vBC, vC2, vRSA, vEP, vZ = 6, 7, 8, 9, 10, 11, 12
KR, VR, QR = 16, 56, 136
SB = (144, 160, 176)
NM, OA = 192, 208
PB = (224, 232)
MK = 240
ACC2 = 16
AF = 80
DA = 4
BW = 112
BR = 128
NBR = 15
GS, QS, SS = 1088, 4352, 17408


def jobs(ty):
    if ty == 0:
        return [("Q", 0, 0), ("Q", 0, 1), ("K", 4, 0), ("K", 4, 1), ("F", 8, 0), ("F", 8, 1), ("H", 12, 0)]
    return [("V", 0, 0), ("V", 0, 1), ("F", 4, 0), ("F", 4, 1), ("F", 8, 0), ("F", 8, 1)]


def chunk_addr(c):
    if c < 12:
        return (c % NSLOT) * SLOT
    return (3 + (c - 12) // 2) * SLOT + ((c - 12) & 1) * 8192


_lbl = [0]


def newlabel(p):
    _lbl[0] += 1
    return f"L_{p}_{_lbl[0]}"


def get_epoch(e, vtmp, vzero):
    L = newlabel("ep")
    D = newlabel("epd")
    e(f"s_mov_b32 s{sT0}, 0")
    e.label(L)
    e(f"buffer_load_dword v{vtmp}, v{vzero}, {sr(sDBG,4)}, 0 offen sc1")
    e("s_waitcnt vmcnt(0)")
    e(f"v_readfirstlane_b32 s{sEP}, v{vtmp}")
    e(f"s_add_u32 s{sT0}, s{sT0}, 1")
    e(f"s_cmp_lg_u32 s{sEP}, 0")
    e(f"s_cbranch_scc1 {D}")
    e("s_sleep 2")
    e(f"s_cmp_lt_u32 s{sT0}, {SPIN_MAX}")
    e(f"s_cbranch_scc1 {L}")
    e.label(D)
    e.vm = []


def poll(e, vaddr, vtmp, mask=None):
    L = newlabel("pl")
    D = newlabel("pld")
    e(f"s_mov_b32 s{sT0}, 0")
    e.label(L)
    e(f"buffer_load_dword v{vtmp}, v{vaddr}, {sr(sWS,4)}, 0 offen sc1")
    e("s_waitcnt vmcnt(0)")
    e(f"v_cmp_ne_u32 vcc, s{sEP}, v{vtmp}")
    e(f"s_add_u32 s{sT0}, s{sT0}, 1")
    e("s_nop 0")
    if mask is None:
        e("s_cmp_eq_u64 vcc, 0")
    else:
        e(f"s_and_b32 s{sT1}, vcc_lo, {mask}")
        e(f"s_cmp_eq_u32 s{sT1}, 0")
    e(f"s_cbranch_scc1 {D}")
    e("s_sleep 1")
    e(f"s_cmp_lt_u32 s{sT0}, {SPIN_MAX}")
    e(f"s_cbranch_scc1 {L}")
    e.label(D)
    e.vm = []


def prologue(e):
    e("s_load_dwordx8 s[68:75], s[0:1], 0")
    e("s_load_dwordx8 s[76:83], s[0:1], 32")
    e("s_load_dwordx4 s[84:87], s[0:1], 64")
    e("s_load_dwordx2 s[88:89], s[0:1], 80")
    e("s_cmp_ge_u32 s2, 256")
    e("s_cbranch_scc1 L_end")
    e("v_lshrrev_b32 v10, 6, v0")
    e("v_and_b32 v0, 63, v0")
    e(f"s_and_b32 s{sT0}, s2, 7")
    e(f"s_lshr_b32 s{sT1}, s2, 3")
    e(f"v_readfirstlane_b32 s{sWV}, v10")
    e(f"s_and_b32 s{sT2}, s{sT0}, 1")
    e(f"s_lshl_b32 s{sT2}, s{sT2}, 3")
    e(f"s_and_b32 s{sT3}, s{sT1}, 7")
    e(f"s_add_u32 s{sR}, s{sT2}, s{sT3}")
    e(f"s_lshr_b32 s{sT2}, s{sT0}, 1")
    e(f"s_lshr_b32 s{sT3}, s{sT1}, 3")
    e(f"s_lshr_b32 s{sTY}, s{sT3}, 1")
    e(f"s_and_b32 s{sT3}, s{sT3}, 1")
    e(f"s_lshl_b32 s{sT2}, s{sT2}, 1")
    e(f"s_add_u32 s{sCI}, s{sT2}, s{sT3}")
    e(f"s_lshl_b32 s{sT2}, s{sT0}, 2")
    e(f"s_and_b32 s{sT3}, s{sT1}, 3")
    e(f"s_add_u32 s{sRB}, s{sT2}, s{sT3}")
    e(f"s_lshr_b32 s{sG}, s{sT1}, 2")
    e(f"v_lshlrev_b32 v{vL16}, 4, v0")
    e("s_waitcnt lgkmcnt(0)")
    srd(e, sX, 68, 69, 2048 * 1024)
    srd(e, sWS, 88, 89, WS_USED)
    srd(e, sDBG, 86, 87, 256)
    e(f"s_cmp_ge_u32 s{sWV}, 4")
    e("s_cbranch_scc1 L_loader")


def c_load_ln(e):
    sXL, sXG, sRT = sP[0], sP[1], sP[2]
    e("s_setprio 2")
    e("v_lshrrev_b32 v10, 4, v0")
    e("v_and_b32 v11, 15, v0")
    for m in range(4):
        e(f"v_add_u32 v{12+m}, {4*m}, v10")
        e(f"v_xor_b32 v{12+m}, v{12+m}, v11")
        e(f"v_lshlrev_b32 v{12+m}, 4, v{12+m}")
        e(f"v_lshl_add_u32 v{12+m}, v10, 10, v{12+m}")
    e(f"s_lshl_b32 s{sXL}, s{sWV}, 15")
    e(f"s_lshl_b32 s{sXG}, s{sR}, 17")
    e(f"s_add_u32 s{sXG}, s{sXG}, s{sXL}")
    e(f"s_add_u32 s{sXL}, s{sXL}, {SLOT}")
    for cb in range(4):
        for j in range(8):
            e(f"s_add_u32 m0, s{sXL}, {cb*8192 + j*1024}")
            e(f"s_add_u32 s{sT0}, s{sXG}, {j*4096 + cb*256}")
            e.vmem(f"buffer_load_dwordx4 v{12 + (j & 3)}, {sr(sX,4)}, s{sT0} offen lds", ("x", cb))
    e("v_and_b32 v10, 31, v0")
    e("v_lshrrev_b32 v11, 5, v0")
    e("v_and_b32 v12, 15, v0")
    e("v_xor_b32 v12, v12, v11")
    e("v_lshlrev_b32 v12, 4, v12")
    e("v_lshl_add_u32 v12, v10, 8, v12")
    e(f"v_add_u32 v12, s{sXL}, v12")
    for s in range(8):
        e(f"v_xor_b32 v{TA+s}, {(2*s) << 4}, v12")
    e("v_and_b32 v13, 15, v0")
    e("v_lshrrev_b32 v14, 2, v13")
    e("v_and_b32 v15, 3, v0")
    e("v_lshlrev_b32 v15, 3, v15")
    e("v_bfe_u32 v10, v0, 4, 1")
    e("v_lshl_add_u32 v15, v10, 5, v15")
    e(f"v_lshl_add_u32 v{vT0}, v11, 10, v15")
    e(f"v_lshl_add_u32 v{vT0}, v14, 7, v{vT0}")
    e("v_bfe_u32 v10, v0, 3, 1")
    e(f"v_lshl_add_u32 v{vT0}, v10, 6, v{vT0}")
    e(f"v_xor_b32 v{vT1}, 64, v{vT0}")
    e(f"v_lshl_add_u32 v{vTH}, v11, 9, v15")
    e(f"v_lshl_add_u32 v{vTH}, v14, 6, v{vTH}")
    e(f"v_lshlrev_b32 v{vBC}, 4, v11")
    e(f"v_mov_b32 v{vC2}, {f32(GC2)}")
    for a in range(8):
        e(f"v_mov_b32 v{TT+a}, 0")
    e(f"v_mov_b32 v{TP}, 0x3f803f80")
    e(f"v_mov_b32 v{TP+1}, 0x00003f80")
    e(f"v_mov_b32 v{TP+2}, 0x3f800000")
    for cb in range(4):
        e.wait(vm=("x", cb))
        for s in range(8):
            e.ds(f"ds_read_b128 {vr(X0 + 4*(8*cb+s), 4)}, v{TA+s} offset:{cb*8192}", ("xf", cb, s))
        if cb > 0:
            p = cb - 1
            e.wait(ds=("xf", p, 7))
            for d in range(32):
                e(f"v_dot2c_f32_bf16 v{TT + (d & 3)}, v{X0 + 32*p + d}, v{TP}")
    e.wait(ds="*")
    stamp_mid(e, 0)
    e("s_barrier")
    for d in range(32):
        e(f"v_dot2c_f32_bf16 v{TT + (d & 3)}, v{X0 + 96 + d}, v{TP}")
    e(f"v_add_f32 v{TT}, v{TT}, v{TT+1}")
    e(f"v_add_f32 v{TT+2}, v{TT+2}, v{TT+3}")
    e(f"v_add_f32 v10, v{TT}, v{TT+2}")
    e("v_mov_b32 v11, v10")
    e("v_permlane32_swap_b32 v10, v11")
    e("v_add_f32 v10, v10, v11")
    e(f"v_mul_f32 v10, {f32(-1.0/512)}, v10")
    for d0 in range(0, 128, 4):
        tb = TA + (8 if (d0 >> 2) & 1 else 0)
        for j in range(4):
            e(f"v_dot2_f32_bf16 v{tb+2*j}, v{X0+d0+j}, v{TP+1}, v10")
            e(f"v_dot2_f32_bf16 v{tb+2*j+1}, v{X0+d0+j}, v{TP+2}, v10")
        if d0 > 0:
            for j in range(4):
                e(f"v_dot2c_f32_bf16 v{TT+4+j}, v{X0+d0-4+j}, v{X0+d0-4+j}")
        for j in range(4):
            e(f"v_cvt_pk_bf16_f32 v{X0+d0+j}, v{tb+2*j}, v{tb+2*j+1}")
    for j in range(4):
        e(f"v_dot2c_f32_bf16 v{TT+4+j}, v{X0+124+j}, v{X0+124+j}")
    e(f"v_add_f32 v{TT+4}, v{TT+4}, v{TT+5}")
    e(f"v_add_f32 v{TT+6}, v{TT+6}, v{TT+7}")
    e(f"v_add_f32 v10, v{TT+4}, v{TT+6}")
    e("v_mov_b32 v11, v10")
    e("v_permlane32_swap_b32 v10, v11")
    e("v_add_f32 v10, v10, v11")
    e(f"v_mov_b32 v11, {f32(1e-5)}")
    e(f"v_fmac_f32 v11, {f32(1.0/512)}, v10")
    e(f"v_rsq_f32 v{vRSTD}, v11")
    e("v_and_b32 v12, 31, v0")
    e("v_lshlrev_b32 v12, 2, v12")
    e(f"s_lshl_b32 s{sT0}, s{sWV}, 7")
    e(f"s_add_u32 s{sT0}, s{sT0}, {RSL}")
    e(f"v_add_u32 v12, s{sT0}, v12")
    e(f"v_mul_f32 v{vRSQ}, {f32(QSCALE)}, v{vRSTD}")
    e.ds(f"ds_write_b32 v12, v{vRSTD}", "rs")
    e(f"v_add_u32 v{vRSA}, s{sT0}, v{vBC}")
    e(f"s_lshl_b32 s{sRT}, s{sR}, 2")
    e(f"s_add_u32 s{sRT}, s{sRT}, s{sWV}")
    e(f"v_mov_b32 v{vZ}, 0")
    stamp_mid(e, 1)
    get_epoch(e, 13, vZ)
    e(f"v_mov_b32 v{vEP}, s{sEP}")


def epilogue_items(kind, acc, t, fidx, tile):
    sD0, sD1, sF0, sF1 = sP[3], sP[4], sP[5], sP[6]
    it = []
    if kind in "QK":
        sc = vRSQ if kind == "Q" else vRSTD
        sbase = sD0 if kind == "Q" else sD1
        for hh in range(2):
            tb = TA + 8 * hh
            pb = TP + 4 * hh
            for j in range(8):
                it.append(f"v_mul_f32 v{tb+j}, v{sc}, v{acc+8*hh+j}")
            for j in range(4):
                it.append(f"v_cvt_pk_bf16_f32 v{pb+j}, v{tb+2*j}, v{tb+2*j+1}")
            it.append(f"s_add_u32 s{sT0}, s{sbase}, {(2*t+hh) * 65536}")
            it.append(("vm", f"buffer_store_dwordx4 {vr(pb,4)}, v{vL16}, {sr(sWS,4)}, s{sT0} offen{ST}", ("st", tile)))
    elif kind == "V":
        for g in range(4):
            it.append(("ds", f"ds_read_b128 {vr(TA+4*g,4)}, v{vRSA} offset:{g*32}", ("ep", g)))
        for hh in range(2):
            pb = TP + 4 * hh
            it.append(("wds", ("ep", 2 * hh + 1)))
            for j in range(8):
                it.append(f"v_mul_f32 v{TA+8*hh+j}, v{TA+8*hh+j}, v{acc+8*hh+j}")
            for j in range(4):
                it.append(f"v_cvt_pk_bf16_f32 v{pb+j}, v{TA+8*hh+2*j}, v{TA+8*hh+2*j+1}")
            it.append(f"s_add_u32 s{sT0}, s{sD0}, {t * 131072 + hh * 1024}")
            it.append(("vm", f"buffer_store_dwordx4 {vr(pb,4)}, v{vL16}, {sr(sWS,4)}, s{sT0} offen{ST}", ("st", tile)))
    else:
        for g in range(4):
            it.append(("ds", f"ds_read_b128 {vr(TA+4*g,4)}, v{vBC} offset:{B1L - 131072 + (fidx*64 + t*32 + g*8) * 4}", ("ep", g)))
        for g in range(4):
            a = TA + 4 * g
            tt = TT + 4 * (g & 1)
            it.append(("wds", ("ep", g)))
            R = range(4)
            it += [f"v_fma_f32 v{a+j}, v{acc+4*g+j}, v{vRSTD}, v{a+j}" for j in R]
            it += [f"v_mul_f32 v{tt+j}, v{a+j}, v{a+j}" for j in R]
            it += [f"v_fmaak_f32 v{tt+j}, v{tt+j}, v{vC2}, {f32(GC1)}" for j in R]
            it += [f"v_mul_f32 v{tt+j}, v{tt+j}, v{a+j}" for j in R]
            it += [f"v_exp_f32 v{tt+j}, v{tt+j}" for j in R]
            it += [f"v_add_f32 v{tt+j}, 1.0, v{tt+j}" for j in R]
            it += [f"v_rcp_f32 v{tt+j}, v{tt+j}" for j in R]
            it += [f"v_mul_f32 v{a+j}, v{a+j}, v{tt+j}" for j in R]
            pb = TP + 2 * g
            it.append(f"v_cvt_pk_bf16_f32 v{pb}, v{a}, v{a+1}")
            it.append(f"v_cvt_pk_bf16_f32 v{pb+1}, v{a+2}, v{a+3}")
            if g & 1:
                hh = g >> 1
                it.append(f"s_add_u32 s{sT0}, s{sF1 if fidx else sF0}, {(2*t + hh) * 1024}")
                it.append(("vm", f"buffer_store_dwordx4 {vr(TP+4*hh,4)}, v{vL16}, {sr(sWS,4)}, s{sT0} offen{ST}", ("st", tile)))
    return it


def flag_items(sflag, off, tag="st"):
    return [("wvm", tag),
            ("vm", f"buffer_store_dword v{vEP}, v{vZ}, {sr(sWS,4)}, s{sflag} offen offset:{off}{ST}", "fl")]


def c_main(e, ty):
    T = jobs(ty)
    sRT = sP[2]
    sD0, sD1, sF0, sF1, sFQ, sFH = sP[3], sP[4], sP[5], sP[6], sP[7], sP[8]
    if ty == 0:
        e(f"s_lshl_b32 s{sD0}, s{sCI}, 18")
        e(f"s_lshl_b32 s{sT0}, s{sRT}, 10")
        e(f"s_add_u32 s{sD0}, s{sD0}, s{sT0}")
        e(f"s_add_u32 s{sD1}, s{sD0}, {KF}")
        e(f"s_mul_i32 s{sF0}, s{sRT}, {144*1024}")
        e(f"s_add_u32 s{sF0}, s{sF0}, {A2}")
        e(f"s_lshl_b32 s{sT0}, s{sCI}, 11")
        e(f"s_add_u32 s{sF1}, s{sF0}, s{sT0}")
        e(f"s_add_u32 s{sF1}, s{sF1}, {96*1024}")
        e(f"s_lshl_b32 s{sT0}, s{sCI}, 12")
        e(f"s_add_u32 s{sF0}, s{sF0}, s{sT0}")
    else:
        e(f"s_lshl_b32 s{sD0}, s{sCI}, 18")
        e(f"s_lshl_b32 s{sT0}, s{sRT}, 11")
        e(f"s_add_u32 s{sD0}, s{sD0}, s{sT0}")
        e(f"s_add_u32 s{sD0}, s{sD0}, {VF}")
        e(f"s_mul_i32 s{sF0}, s{sRT}, {144*1024}")
        e(f"s_add_u32 s{sF0}, s{sF0}, {A2 + 32*1024}")
        e(f"s_lshl_b32 s{sT0}, s{sCI}, 13")
        e(f"s_add_u32 s{sF0}, s{sF0}, s{sT0}")
        e(f"s_add_u32 s{sF1}, s{sF0}, 4096")
    e(f"s_lshl_b32 s{sFQ}, s{sRT}, 4")
    e(f"s_add_u32 s{sFQ}, s{sFQ}, s{sCI}")
    e(f"s_add_u32 s{sFQ}, s{sFQ}, {8*ty}")
    e(f"s_lshl_b32 s{sFH}, s{sFQ}, 3")
    e(f"s_lshl_b32 s{sFQ}, s{sFQ}, 2")
    e(f"s_add_u32 s{sFQ}, s{sFQ}, {FQ}")
    e(f"s_add_u32 s{sFH}, s{sFH}, {FH}")
    e(f"v_add_u32 v{vBC}, 0x20000, v{vBC}")
    nF = 32 * len(T)

    def reads(F):
        i, n = divmod(F, 32)
        kind, c0, t = T[i]
        q, s = divmod(n, 8)
        c = c0 + q
        it = []
        if s == 0:
            if (t == 0 and c <= 8) or (ty == 0 and i == 5 and q == 0):
                it.append("s_barrier")
            src = vTH if kind == "H" else (vT1 if t else vT0)
            it.append(f"v_add_u32 v{vADDR}, {chunk_addr(c)}, v{src}")
        b = WF0 + 4 * (F % NB)
        st, us = (1024, 256) if kind == "H" else (2048, 512)
        it.append(("ds", f"ds_read_b64_tr_b16 {vr(b,2)}, v{vADDR} offset:{s*st}", ("wf", F)))
        it.append(("ds", f"ds_read_b64_tr_b16 {vr(b+2,2)}, v{vADDR} offset:{s*st+us}", ("wf", F)))
        return it

    for F in range(PD):
        for it in reads(F):
            e.run(it)
    prev = None
    pend_flag = None
    for i, (kind, c0, t) in enumerate(T):
        acc = ACC1[i & 1]
        main = []
        for n in range(32):
            F = 32 * i + n
            g = []
            if n % 2 == 0:
                g.append(("wds", ("wf", F + 1)))
            b = WF0 + 4 * (F % NB)
            w, x = vr(b, 4), vr(X0 + 4 * n, 4)
            A, B = (x, w) if kind == "V" else (w, x)
            C = "0" if n == 0 else vr(acc, 16)
            g.append(f"v_mfma_f32_32x32x16_bf16 {vr(acc,16)}, {A}, {B}, {C}")
            if F + PD < nF:
                g += reads(F + PD)
            if n == 20 and pend_flag:
                g += pend_flag
                pend_flag = None
            main.append(g)
        fill = epilogue_items(*prev) if prev else []
        interleave(e, main, fill, None, start=3)
        if prev and prev[2] == 1:
            if prev[0] in "KV":
                pend_flag = flag_items(sFQ, 0, ("st", prev[4]))
            elif prev[0] == "F":
                pend_flag = flag_items(sFH, 4 * prev[3], ("st", prev[4]))
        fidx = 0
        if kind in "FH":
            fidx = 0 if c0 == (8 if ty == 0 else 4) else 1
        prev = (kind, acc, t, fidx, i)
    fin = epilogue_items(*prev)
    if pend_flag:
        fin = fin + pend_flag
    for it in fin:
        e.run(it)


def attn_consts(e):
    e("v_and_b32 v2, 31, v0")
    e("v_lshrrev_b32 v3, 5, v0")
    e("v_lshlrev_b32 v4, 2, v3")
    e("v_sub_u32 v4, v2, v4")
    for r in range(16):
        e(f"v_cmp_le_i32 {sr(sMASK+2*r,2)}, {8*(r>>2) + (r&3)}, v4")
    e("v_mov_b32 v5, 0xffff")
    e("v_mov_b32 v6, 0xffff0000")
    for p in range(8):
        e(f"v_cndmask_b32 v{MK+p}, 0, v5, {sr(sMASK+4*p,2)}")
        e(f"v_cndmask_b32 v7, 0, v6, {sr(sMASK+4*p+2,2)}")
        e(f"v_or_b32 v{MK+p}, v{MK+p}, v7")


def attn_setup(e):
    sHD, sT0q, sKT, sKB, sQB, sVB, sOB, sFO = sP[0], sP[1], sP[2], sP[3], sP[4], sP[5], sP[6], sP[7]
    e(f"s_lshl_b32 s{sHD}, s{sG}, 2")
    e(f"s_add_u32 s{sHD}, s{sHD}, s{sWV}")
    e(f"s_lshl_b32 s{sT0q}, s{sRB}, 1")
    e(f"s_sub_u32 s{sKT}, s{sT0q}, 8")
    e(f"s_lshl_b32 s{sKB}, s{sHD}, 16")
    e(f"s_lshl_b32 s{sQB}, s{sT0q}, 10")
    e(f"s_add_u32 s{sQB}, s{sQB}, s{sKB}")
    e(f"s_add_u32 s{sKB}, s{sKB}, {KF}")
    e(f"s_lshr_b32 s{sVB}, s{sHD}, 1")
    e(f"s_lshl_b32 s{sVB}, s{sVB}, 17")
    e(f"s_add_u32 s{sVB}, s{sVB}, {VF}")
    e(f"s_mul_i32 s{sOB}, s{sT0q}, {144*1024}")
    e(f"s_lshl_b32 s{sT0}, s{sHD}, 10")
    e(f"s_add_u32 s{sOB}, s{sOB}, s{sT0}")
    e(f"s_add_u32 s{sOB}, s{sOB}, {A2 + 112*1024}")
    e(f"s_lshl_b32 s{sFO}, s{sRB}, 5")
    e(f"s_add_u32 s{sFO}, s{sFO}, s{sHD}")
    e(f"s_lshl_b32 s{sFO}, s{sFO}, 2")
    e(f"s_add_u32 s{sFO}, s{sFO}, {FO}")
    for j in range(10):
        e(f"s_cmp_ge_i32 s{sKT}, {-j}")
        e(f"s_cselect_b32 s{sT0}, 0x3f803f80, 0")
        for k in range(8):
            e(f"v_mov_b32 v{VR+8*j+k}, s{sT0}")
    e("v_min_u32 v2, 19, v0")
    e("v_lshrrev_b32 v3, 1, v2")
    e(f"v_add_u32 v3, s{sKT}, v3")
    e("v_max_i32 v3, 0, v3")
    e("v_and_b32 v2, 1, v2")
    e("v_lshlrev_b32 v2, 3, v2")
    e("v_lshl_add_u32 v2, v3, 4, v2")
    e(f"v_add_u32 v2, s{sG}, v2")
    e("v_lshlrev_b32 v2, 2, v2")
    e(f"v_add_u32 v13, {FQ}, v2")


def attn_loads(e):
    sHD, sT0q, sKT, sKB, sQB, sVB, sOB, sFO = sP[0], sP[1], sP[2], sP[3], sP[4], sP[5], sP[6], sP[7]
    e.vmem(f"buffer_load_dwordx4 {vr(QR,4)}, v{vL16}, {sr(sWS,4)}, s{sQB} offen{LD}", "q")
    e.vmem(f"buffer_load_dwordx4 {vr(QR+4,4)}, v{vL16}, {sr(sWS,4)}, s{sQB} offen offset:1024{LD}", "q")
    e("v_lshrrev_b32 v3, 5, v0")
    e("v_lshlrev_b32 v8, 9, v3")
    e(f"s_lshl_b32 s{sT0}, s{sKT}, 10")
    e(f"v_add_u32 v9, s{sT0}, v{vL16}")
    order = [0, 8, 1, 2, 3, 4, 5, 6, 7, 9]
    tmps = [2, 3, 4, 5]
    for n, j in enumerate(order):
        t = tmps[n & 3]
        e(f"v_add_u32 v{t}, {1024*j}, v9")
        e(f"v_max_i32 v{t}, v{t}, v8")
        e.vmem(f"buffer_load_dwordx4 {vr(KR+4*j,4)}, v{t}, {sr(sWS,4)}, s{sKB} offen{LD}", ("k", j))
    e(f"s_and_b32 s{sT1}, s{sHD}, 1")
    e(f"s_lshl_b32 s{sT1}, s{sT1}, 8")
    e(f"s_lshl_b32 s{sT0}, s{sKT}, 11")
    e(f"s_add_u32 s{sT0}, s{sT0}, s{sT1}")
    e(f"v_add_u32 v9, s{sT0}, v{vL16}")
    e("s_mov_b32 exec_lo, 0xffff")
    e("s_mov_b32 exec_hi, 0xffff")
    for n, j in enumerate(order):
        t = tmps[n & 3]
        e(f"v_add_u32 v{t}, {2048*j}, v9")
        e.vmem(f"buffer_load_dwordx4 {vr(VR+8*j,4)}, v{t}, {sr(sWS,4)}, s{sVB} offen{LD}", ("v", j))
        e.vmem(f"buffer_load_dwordx4 {vr(VR+8*j+4,4)}, v{t}, {sr(sWS,4)}, s{sVB} offen offset:1024{LD}", ("v", j))
    e("s_mov_b64 exec, -1")


def mf(d, a, b, c):
    return f"v_mfma_f32_32x32x16_bf16 {vr(d,16)}, {vr(a,4)}, {vr(b,4)}, {c if isinstance(c,str) else vr(c,16)}"


def attn_compute(e):
    sOB, sFO = sP[6], sP[7]
    for u in range(2):
        q = QR + 4 * u
        j0, j8 = u, u + 8
        mids = list(range(u + 1, u + 8))
        bufs = [SB[0], SB[1], SB[2], NM, OA]
        e.wait(vm=("k", 8 if u == 0 else 9))
        e(mf(bufs[0], KR + 4 * j0, q, "0"))
        e(mf(bufs[1], KR + 4 * j8, q, "0"))
        seq = []

        def issue(n):
            j = mids[n]
            e.wait(vm=("k", j))
            b = bufs[(2 + n) % 5]
            e(mf(b, KR + 4 * j, q, "0"))
            seq.append(b)
        issue(0)
        issue(1)
        issue(2)
        for r in range(16):
            e(f"v_cndmask_b32 v{bufs[0]+r}, v{bufs[0]+r}, v{bufs[1]+r}, {sr(sMASK+2*r,2)}")
        b = bufs[0]
        e(f"v_max3_f32 v2, v{b}, v{b+1}, v{b+2}")
        e(f"v_max3_f32 v3, v{b+3}, v{b+4}, v{b+5}")
        for r in range(6, 16, 4):
            e(f"v_max3_f32 v2, v2, v{b+r}, v{b+r+1}")
            if r + 3 < 16:
                e(f"v_max3_f32 v3, v3, v{b+r+2}, v{b+r+3}")
        for n in range(7):
            if n + 3 < 7:
                issue(n + 3)
            b = seq[n]
            for r in range(0, 16, 4):
                e(f"v_max3_f32 v2, v2, v{b+r}, v{b+r+1}")
                e(f"v_max3_f32 v3, v3, v{b+r+2}, v{b+r+3}")
        e("v_max_f32 v2, v2, v3")
        e("v_mov_b32 v3, v2")
        e("v_permlane32_swap_b32 v2, v3")
        e("v_max_f32 v2, v2, v3")
        for r in range(16):
            e(f"v_sub_f32 v{NM+r}, 0, v2")
        e(mf(SB[0], KR + 4 * j0, q, NM))
        e(mf(SB[1], KR + 4 * j8, q, NM))
        e(mf(SB[2], KR + 4 * mids[0], q, NM))
        for r in range(16):
            e(f"v_cndmask_b32 v{SB[0]+r}, v{SB[0]+r}, v{SB[1]+r}, {sr(sMASK+2*r,2)}")
        e(mf(SB[1], KR + 4 * mids[1], q, NM))
        for r in range(16):
            e(f"v_exp_f32 v{SB[0]+r}, v{SB[0]+r}")
        for p in range(8):
            e(f"v_cvt_pk_bf16_f32 v{PB[1]+p}, v{SB[0]+2*p}, v{SB[0]+2*p+1}")
        e(mf(SB[0], KR + 4 * mids[2], q, NM))
        for p in range(8):
            e(f"v_and_b32 v{PB[0]+p}, v{MK+p}, v{PB[1]+p}")
        for p in range(8):
            e(f"v_bfi_b32 v{PB[1]+p}, v{MK+p}, 0, v{PB[1]+p}")
        e.wait(vm=("v", 8 if u == 0 else 9))
        e(mf(OA, VR + 8 * j8, PB[0], "0"))
        e(mf(OA, VR + 8 * j8 + 4, PB[0] + 4, OA))
        e(mf(OA, VR + 8 * j0, PB[1], OA))
        e(mf(OA, VR + 8 * j0 + 4, PB[1] + 4, OA))
        order = [SB[2], SB[1], SB[0]]
        for n in range(7):
            b = order[n % 3]
            pb = PB[n & 1]
            for r in range(16):
                e(f"v_exp_f32 v{b+r}, v{b+r}")
            for p in range(8):
                e(f"v_cvt_pk_bf16_f32 v{pb+p}, v{b+2*p}, v{b+2*p+1}")
            if n + 3 < 7:
                e(mf(b, KR + 4 * mids[n + 3], q, NM))
            e.wait(vm=("v", mids[n]))
            e(mf(OA, VR + 8 * mids[n], pb, OA))
            e(mf(OA, VR + 8 * mids[n] + 4, pb + 4, OA))
        e(f"v_rcp_f32 v2, v{OA+8}")
        for r in range(8):
            e(f"v_mul_f32 v{SB[0]+r}, v2, v{OA+r}")
        for p in range(4):
            e(f"v_cvt_pk_bf16_f32 v{4+p}, v{SB[0]+2*p}, v{SB[0]+2*p+1}")
        if u:
            e(f"s_add_u32 s{sOB}, s{sOB}, {144*1024}")
        e.vmem(f"buffer_store_dwordx4 v[4:7], v{vL16}, {sr(sWS,4)}, s{sOB} offen{ST}", "st")
    for it in flag_items(sFO, 0):
        e.run(it)


def c_attn(e):
    sFH = sP[8]
    stamp_mid(e, 2)
    attn_setup(e)
    attn_consts(e)
    e("s_waitcnt vmcnt(0)")
    e(f"buffer_store_dword v{vEP}, v{vZ}, {sr(sWS,4)}, s{sFH} offen offset:4{ST}")
    e.vm = []
    stamp_mid(e, 3)
    poll(e, 13, 14)
    stamp_mid(e, 4)
    attn_loads(e)
    if common.STAMP:
        e("s_waitcnt vmcnt(0)")
        stamp_mid(e, 5)
    attn_compute(e)


def ksteps(jw_sym=False):
    L = []
    for c in range(2):
        L += [(0, 8 * c + i) for i in range(4)]
    L += [(1, i) for i in range(8)]
    for c in range(2):
        L += [(2, 8 * c + 4 + i) for i in range(4)]
    L += [(3, i) for i in range(4)]
    L += [(4, i) for i in range(8)]
    return L


KBASE = {0: 32, 1: 0, 2: 32, 3: 96, 4: 112}
KSTR = {0: 16, 1: 8, 2: 16, 3: 4, 4: 8}


def l_setup(e):
    sJW = sP[0]
    srd(e, sWQ, 70, 71, 512 * 3072)
    srd(e, sW1, 76, 77, 512 * 3584)
    srd(e, sB1, 78, 79, 1792 * 2)
    srd(e, sW2, 80, 81, 1792 * 1024)
    srd(e, sWO, 72, 73, 512 * 1024)
    srd(e, sB2, 82, 83, 1024)
    srd(e, sOUT, 84, 85, 2048 * 1024)
    e(f"s_sub_u32 s{sJW}, s{sWV}, 4")
    e("v_lshrrev_b32 v5, 3, v0")
    e("v_and_b32 v6, 7, v0")
    e("v_bfe_u32 v7, v0, 4, 1")
    e("v_lshlrev_b32 v7, 2, v7")
    e("v_xor_b32 v6, v6, v7")
    e("v_lshlrev_b32 v6, 4, v6")
    e("v_mul_u32_u24 v2, 3072, v5")
    e("v_add_u32 v2, v2, v6")
    e("v_mul_u32_u24 v3, 3584, v5")
    e("v_add_u32 v3, v3, v6")
    e("v_lshrrev_b32 v5, 2, v0")
    e("v_and_b32 v6, 3, v0")
    e("v_lshlrev_b32 v6, 4, v6")
    e("v_mul_u32_u24 v4, 3584, v5")
    e("v_add_u32 v4, v4, v6")
    e("v_and_b32 v5, 31, v0")
    e("v_lshrrev_b32 v6, 5, v0")
    e("v_lshlrev_b32 v5, 2, v5")
    e("v_lshl_add_u32 v8, v6, 12, v5")
    e("v_add_u32 v9, 0x2000, v8")
    e(f"v_mov_b32 v{vZ}, 0")
    e(f"s_lshl_b32 s{sT0}, s{sG}, 7")
    e(f"s_mul_i32 s{sT1}, s{sRB}, {2*144*1024}")
    e(f"s_add_u32 s{sT1}, s{sT1}, {A2}")
    for cls in range(5):
        kb = KBASE[cls] if cls < 4 else 0
        e(f"s_mul_i32 s{sT2}, s{sJW}, {KSTR[cls]*16*1024}")
        e(f"s_add_u32 s{90+cls}, s{sT2}, s{sT0}")
        e(f"s_add_u32 s{90+cls}, s{90+cls}, {kb*16*1024}")
        e(f"s_mul_i32 s{sT2}, s{sJW}, {KSTR[cls]*1024}")
        e(f"s_add_u32 s{95+cls}, s{sT2}, s{sT1}")
        e(f"s_add_u32 s{95+cls}, s{95+cls}, {KBASE[cls]*1024}")


def ldB(e, n):
    cls, off = ksteps()[n]
    base = BR + 8 * (n % NBR)
    e(f"s_add_u32 s{sT0}, s{90+cls}, {off*16*1024}")
    for i in range(8):
        kp, odd = i >> 1, i & 1
        dst = base + kp + 4 * odd
        va = 9 if i >= 4 else 8
        e.vmem(f"buffer_load_dword v{dst}, v{va}, {sr(sWO if cls == 4 else sW2,4)}, s{sT0} offen offset:{(i&3)*1024}", ("b", n))


def epoch_scan(e):
    S = newlabel("scan_skip")
    e(f"s_or_b32 s{sT0}, s2, s{sP[0]}")
    e(f"s_cmp_lg_u32 s{sT0}, 0")
    e(f"s_cbranch_scc1 {S}")
    e(f"s_mov_b32 s{sT1}, {FLG}")
    for i in range(16):
        e(f"buffer_load_dwordx4 {vr(16+4*i,4)}, v{vL16}, {sr(sWS,4)}, s{sT1} offen sc1")
        e(f"s_add_u32 s{sT1}, s{sT1}, 1024")
    e("s_waitcnt vmcnt(0)")
    e(f"v_readfirstlane_b32 s{sT2}, v16")
    L = newlabel("scan")
    e.label(L)
    e(f"s_add_u32 s{sT2}, s{sT2}, 1")
    e(f"s_cmp_eq_u32 s{sT2}, 0")
    e(f"s_cbranch_scc1 {L}")
    e("s_mov_b64 s[100:101], 0")
    for i in range(64):
        e(f"v_cmp_eq_u32 vcc, s{sT2}, v{16+i}")
        e("s_nop 1")
        e("s_or_b64 s[100:101], s[100:101], vcc")
    e("s_cmp_lg_u64 s[100:101], 0")
    e(f"s_cbranch_scc1 {L}")
    e(f"v_mov_b32 v16, s{sT2}")
    e(f"buffer_store_dword v16, v{vZ}, {sr(sDBG,4)}, 0 offen sc1")
    e.label(S)


def l_phase1(e, ty):
    sJW = sP[0]
    sGQ, sG1, sL4, sL2 = sP[1], sP[2], sP[3], sP[4]
    sJ = sP[5:9]
    sBa, sBb = sP[9], sP[10]
    e(f"s_mul_i32 s{sGQ}, s{sJW}, {32*3072}")
    e(f"s_mul_i32 s{sG1}, s{sJW}, {32*3584}")
    e(f"s_lshl_b32 s{sL4}, s{sJW}, 12")
    e(f"s_lshl_b32 s{sL2}, s{sJW}, 11")
    if ty == 0:
        ch = [(sWQ, 3072, sJ[0], False)] * 4 + [(sWQ, 3072, sJ[1], False)] * 4 + [(sW1, 3584, sJ[2], False)] * 4 + [(sW1, 3584, sJ[3], True)] * 4
        e(f"s_lshl_b32 s{sBa}, s{sCI}, 7")
        e(f"s_add_u32 s{sJ[0]}, s{sGQ}, s{sBa}")
        e(f"s_add_u32 s{sJ[1]}, s{sJ[0]}, 1024")
        e(f"s_add_u32 s{sJ[2]}, s{sG1}, s{sBa}")
        e(f"s_lshl_b32 s{sBb}, s{sCI}, 6")
        e(f"s_add_u32 s{sBb}, s{sBb}, 3072")
        e(f"s_add_u32 s{sJ[3]}, s{sG1}, s{sBb}")
    else:
        ch = [(sWQ, 3072, sJ[0], False)] * 4 + [(sW1, 3584, sJ[1], False)] * 4 + [(sW1, 3584, sJ[2], False)] * 4
        e(f"s_lshl_b32 s{sT0}, s{sCI}, 7")
        e(f"s_add_u32 s{sJ[0]}, s{sGQ}, s{sT0}")
        e(f"s_add_u32 s{sJ[0]}, s{sJ[0]}, 2048")
        e(f"s_lshl_b32 s{sBa}, s{sCI}, 8")
        e(f"s_add_u32 s{sBa}, s{sBa}, 1024")
        e(f"s_add_u32 s{sBb}, s{sBa}, 128")
        e(f"s_add_u32 s{sJ[1]}, s{sG1}, s{sBa}")
        e(f"s_add_u32 s{sJ[2]}, s{sJ[1]}, 128")

    def dma(c):
        srdb, ldw, sj, half = ch[c]
        q = c & 3
        la = chunk_addr(c)
        if not half:
            voff = 2 if ldw == 3072 else 3
            for u in range(4):
                e(f"s_add_u32 m0, s{sL4}, {la + u*1024}")
                e(f"s_add_u32 s{sT0}, s{sj}, {(128*q + 8*u) * ldw}")
                e.vmem(f"buffer_load_dwordx4 v{voff}, {sr(srdb,4)}, s{sT0} offen lds", ("c", c))
        else:
            for u in range(2):
                e(f"s_add_u32 m0, s{sL2}, {la + u*1024}")
                e(f"s_add_u32 s{sT0}, s{sj}, {(128*q + 16*u) * ldw}")
                e.vmem(f"buffer_load_dwordx4 v4, {sr(srdb,4)}, s{sT0} offen lds", ("c", c))

    dma(0)
    e("v_lshlrev_b32 v5, 1, v0")
    e.vmem(f"buffer_load_ushort v6, v5, {sr(sB1,4)}, s{sBa} offen", "b1")
    e.vmem(f"buffer_load_ushort v7, v5, {sr(sB1,4)}, s{sBb} offen", "b1")
    e("v_lshlrev_b32 v5, 2, v0")
    e(f"v_add_u32 v5, {B1L}, v5")
    e.wait(vm="b1")
    e("v_lshlrev_b32 v6, 16, v6")
    e("v_lshlrev_b32 v7, 16, v7")
    e.ds("ds_write_b32 v5, v6", "b1")
    e.ds("ds_write_b32 v5, v7 offset:256", "b1")
    epoch_scan(e)
    e.wait(ds="*")
    e("s_barrier")
    n = len(ch)
    for c in range(1, 9):
        dma(c)
    nb = 0
    sched = {0: 2, 1: 2, 2: 2, 3: 1, 4: 1, 5: 1, 6: 2, 7: 2, 8: 2}
    for k in range(9):
        e.wait(vm=("c", k if k < 8 else min(n - 1, 13)))
        e("s_barrier")
        nxt = {4: (9, 10, 11), 5: (12, 13), 8: (14, 15)}.get(k, ())
        for c in nxt:
            if c < n:
                dma(c)
        for _ in range(sched[k]):
            ldB(e, nb)
            nb += 1
    assert nb == NBR
    if ty == 0:
        e.wait(vm=("c", 15))
        e("s_barrier")


def l_gemm2(e):
    sJW = sP[0]
    KS = ksteps()
    NK = len(KS)
    get_epoch(e, 13, vZ)
    e("v_and_b32 v5, 15, v0")
    e("v_lshrrev_b32 v6, 3, v5")
    e("v_bfe_u32 v7, v5, 2, 1")
    e("v_and_b32 v5, 3, v5")
    e("v_lshl_add_u32 v5, v7, 4, v5")
    e("v_lshl_add_u32 v5, v6, 5, v5")
    e(f"s_lshl_b32 s{sT0}, s{sRB}, 6")
    e(f"s_lshl_b32 s{sT1}, s{sJW}, 2")
    e(f"s_add_u32 s{sT0}, s{sT0}, s{sT1}")
    e(f"v_add_u32 v5, s{sT0}, v5")
    e("v_lshlrev_b32 v5, 2, v5")
    e(f"v_add_u32 v14, {FH}, v5")
    e("v_and_b32 v5, 7, v0")
    e(f"s_lshl_b32 s{sT0}, s{sRB}, 5")
    e(f"s_lshl_b32 s{sT1}, s{sJW}, 3")
    e(f"s_add_u32 s{sT0}, s{sT0}, s{sT1}")
    e(f"v_add_u32 v5, s{sT0}, v5")
    e("v_lshlrev_b32 v5, 2, v5")
    e(f"v_add_u32 v15, {FO}, v5")
    e("v_mov_b32 v2, 0x05040100")
    e("v_mov_b32 v3, 0x07060302")
    def lanes(ty, blk):
        return sum(1 << (rt * 8 + ty * 4 + c * 2 + blk) for rt in range(2) for c in range(2))
    PM = {0: lanes(1, 0), 1: lanes(0, 0), 2: lanes(1, 1), 3: lanes(0, 1)}

    def prepoll(cls):
        e.vmem(f"buffer_load_dword v13, v{14 if cls < 4 else 15}, {sr(sWS,4)}, 0 offen sc1", "pf")

    def check(cls):
        OK = newlabel("ok")
        e.wait(vm="pf")
        e(f"v_cmp_ne_u32 vcc, s{sEP}, v13")
        e("s_nop 1")
        e(f"s_and_b32 s{sT1}, vcc_lo, {PM[cls] if cls < 4 else 0xff}")
        e(f"s_cmp_eq_u32 s{sT1}, 0")
        e(f"s_cbranch_scc1 {OK}")
        sv = list(e.vm)
        poll(e, 14 if cls < 4 else 15, 13, PM[cls] if cls < 4 else 0xff)
        e.vm = sv
        e.label(OK)
        stamp_mid(e, cls)

    def ldA(n):
        cls, off = KS[n]
        if n == 0:
            poll(e, 14, 13, PM[cls])
        elif KS[n - 1][0] != cls:
            check(cls)
        if n + 2 < NK and KS[n + 2][0] != KS[n + 1][0]:
            prepoll(KS[n + 2][0])
        for rt in range(2):
            e(f"s_add_u32 s{sT0}, s{95+cls}, {off*1024 + rt*144*1024}")
            e.vmem(f"buffer_load_dwordx4 {vr(AF + 8*(n % DA) + 4*rt, 4)}, v{vL16}, {sr(sWS,4)}, s{sT0} offen{LD}", ("a", n))

    def perm(n):
        rb_ = BR + 8 * (n % NBR)
        wb = BW + 8 * (n & 1)
        e.wait(vm=("b", n))
        for kp in range(4):
            e(f"v_perm_b32 v{wb+kp}, v{rb_+4+kp}, v{rb_+kp}, v2")
            e(f"v_perm_b32 v{wb+4+kp}, v{rb_+4+kp}, v{rb_+kp}, v3")

    for n in range(DA):
        ldA(n)
    perm(0)
    for n in range(NK):
        if n + NBR < NK:
            ldB(e, n + NBR)
        e.wait(vm=("a", n))
        bb = BW + 8 * (n & 1)
        ab = AF + 8 * (n % DA)
        k = 0
        for rt in range(2):
            for nt in range(2):
                acc = ACC2 + 16 * (2 * rt + nt)
                c = "0" if n == 0 else vr(acc, 16)
                e(f"v_mfma_f32_32x32x16_bf16 {vr(acc,16)}, {vr(bb+4*nt,4)}, {vr(ab+4*rt,4)}, {c}")
                k += 1
                if k == 1 and n + 1 < NK:
                    perm(n + 1)
        if n + DA < NK:
            ldA(n + DA)


def l_final(e):
    sJW = sP[0]
    sTB, sCB = sP[1], sP[2]
    e(f"s_lshl_b32 s{sT0}, s{sJW}, 3")
    e("v_lshrrev_b32 v160, 3, v0")
    e(f"v_add_u32 v160, s{sT0}, v160")
    e("v_and_b32 v161, 7, v0")
    e("v_lshlrev_b32 v162, 4, v161")
    e("v_lshl_add_u32 v163, v160, 10, v162")
    e(f"s_lshl_b32 s{sTB}, s{sRB}, 16")
    e(f"s_lshl_b32 s{sCB}, s{sG}, 7")
    e(f"s_add_u32 s{sTB}, s{sTB}, s{sCB}")
    e.vmem(f"buffer_load_dwordx4 v[164:167], v162, {sr(sB2,4)}, s{sCB} offen", "b2")
    for it in range(2):
        e(f"s_add_u32 s{sT0}, s{sTB}, {it*32*1024}")
        e.vmem(f"buffer_load_dwordx4 {vr(168+4*it,4)}, v163, {sr(sX,4)}, s{sT0} offen", "xr")
    e("s_barrier")
    e(f"s_mul_i32 s{sT0}, s{sJW}, {SS}")
    e(f"v_add_u32 v5, s{sT0}, v{vL16}")
    for q in range(4):
        for g in range(4):
            e.ds(f"ds_write_b128 v5, {vr(ACC2 + 16*q + 4*g, 4)} offset:{q*QS + g*GS}", "rw")
    e("v_lshlrev_b32 v176, 4, v160")
    e("v_lshrrev_b32 v177, 1, v161")
    e(f"v_mul_u32_u24 v177, {GS}, v177")
    e("v_add_u32 v176, v176, v177")
    e("v_and_b32 v177, 1, v161")
    e("v_lshl_add_u32 v176, v177, 9, v176")
    e.wait(ds="*")
    e("s_barrier")
    R = 16
    for it in range(2):
        for src in range(4):
            for nt in range(2):
                e.ds(f"ds_read_b128 {vr(R + 32*it + 8*src + 4*nt, 4)}, v176 offset:{src*SS + (2*it+nt)*QS}", ("fr", it))
    e.wait(vm="xr")
    for p in range(4):
        e(f"v_lshlrev_b32 v{180+p}, 16, v{164+p}")
        e(f"v_and_b32 v{184+p}, 0xffff0000, v{164+p}")
    for it in range(2):
        xb = 168 + 4 * it
        for p in range(4):
            e(f"v_lshlrev_b32 v{188+p}, 16, v{xb+p}")
            e(f"v_and_b32 v{192+p}, 0xffff0000, v{xb+p}")
        for j in range(8):
            e(f"v_add_f32 v{188+j}, v{188+j}, v{180+j}")
        e.wait(ds=("fr", it))
        b = R + 32 * it
        for j in range(8):
            e(f"v_add_f32 v{b+j}, v{b+j}, v{b+8+j}")
            e(f"v_add_f32 v{b+16+j}, v{b+16+j}, v{b+24+j}")
        for j in range(8):
            e(f"v_add_f32 v{b+j}, v{b+j}, v{b+16+j}")
        for j in range(8):
            e(f"v_add_f32 v{b+j}, v{b+j}, v{188+j}")
        for p in range(4):
            e(f"v_cvt_pk_bf16_f32 v{b+8+p}, v{b+p}, v{b+4+p}")
        e(f"s_add_u32 s{sT0}, s{sTB}, {it*32*1024}")
        e.vmem(f"buffer_store_dwordx4 {vr(b+8,4)}, v163, {sr(sOUT,4)}, s{sT0} offen", "st")


def gen(name):
    e = Emit()
    stamp_begin(e)
    prologue(e)
    c_load_ln(e)
    e(f"s_cmp_eq_u32 s{sTY}, 1")
    e("s_cbranch_scc1 L_cB")
    sv = (list(e.lgkm), list(e.vm))
    c_main(e, 0)
    e("s_branch L_attn")
    e.label("L_cB")
    e.lgkm, e.vm = list(sv[0]), list(sv[1])
    e("s_nop 4")
    c_main(e, 1)
    e.label("L_attn")
    e("s_nop 4")
    e("s_waitcnt lgkmcnt(0)")
    e.lgkm = []
    c_attn(e)
    stamp_end(e, 0, sWV, sWS)
    e("s_endpgm")
    e.label("L_loader")
    e.lgkm, e.vm = [], []
    l_setup(e)
    e(f"s_cmp_eq_u32 s{sTY}, 1")
    e("s_cbranch_scc1 L_lB")
    l_phase1(e, 0)
    e("s_branch L_g2")
    e.label("L_lB")
    e.lgkm, e.vm = [], []
    l_phase1(e, 1)
    e.label("L_g2")
    e("s_nop 4")
    stamp_mid(e, 0)
    l_gemm2(e)
    stamp_mid(e, 5)
    l_final(e)
    stamp_end(e, 0, sWV, sWS)
    e.label("L_end")
    e("s_endpgm")
    return khead(name) + e.text(), kd(name, 248)


if __name__ == "__main__":
    import sys
    if "--stamp" in sys.argv:
        common.STAMP = True
        common.DBGSRD = sDBG
        sys.argv.remove("--stamp")
    ref = open(f"cdna_kernels/{NAME}.s.ref").read().split("\n")
    hdr = [l for l in ref if l.startswith(";") and "@launch" not in l]
    hdr.append(f"; @launch grid=(256,1,1) block=(512,1,1) lds={LDS_TOTAL}")
    body, desc = gen(NAME + "_kernel")
    out = "\n".join(hdr) + "\n" + '.amdgcn_target "amdgcn-amd-amdhsa--gfx950"\n' + body + desc
    dst = sys.argv[1] if len(sys.argv) > 1 else f"cdna_kernels/{NAME}.s"
    open(dst, "w").write(out)
    print("wrote", dst, len(out), "bytes")
```

```python
import math, struct

NAME = "parallel_sum__sliding_block__dense_activation_gelu__prompt"

MB = 1 << 20
QF = 0
KF = 2 * MB
VF = 4 * MB
A2 = 6 * MB
FLG = 15 * MB
WS_USED = 16 * MB

LOG2E = math.log2(math.e)
K0 = math.sqrt(2.0 / math.pi)
GC1 = -2.0 * K0 * LOG2E
GC2 = GC1 * 0.044715
QSCALE = LOG2E * 0.25


def f32(x):
    return "0x%08x" % struct.unpack("<I", struct.pack("<f", x))[0]


def vr(b, n):
    return f"v[{b}:{b+n-1}]"


def sr(b, n):
    return f"s[{b}:{b+n-1}]"


def kd(name, vgpr, sgpr=102, accum=None):
    if globals()["STAMP"]:
        vgpr = 256
    if accum is None:
        accum = (vgpr + 3) // 4 * 4
    return f""".section .rodata,"a"
.p2align 6
.amdhsa_kernel {name}
  .amdhsa_next_free_vgpr {vgpr}
  .amdhsa_next_free_sgpr {sgpr}
  .amdhsa_accum_offset {accum}
  .amdhsa_group_segment_fixed_size 0
  .amdhsa_kernarg_size 88
  .amdhsa_user_sgpr_count 2
  .amdhsa_user_sgpr_kernarg_segment_ptr 1
  .amdhsa_system_sgpr_workgroup_id_x 1
.end_amdhsa_kernel
"""


def khead(name):
    return f""".text
.globl {name}
.p2align 8
.type {name},@function
{name}:
"""


def srd(e, d, lo, hi, nbytes):
    e(f"s_mov_b32 s{d}, s{lo}")
    e(f"s_and_b32 s{d+1}, s{hi}, 0xffff")
    e(f"s_mov_b32 s{d+2}, {nbytes}")
    e(f"s_mov_b32 s{d+3}, 0x20000")


def interleave(e, main, fill, slots, start=0):
    from emit import cost
    total = sum(cost(f) for f in fill)
    n = len(main) - start
    fi = 0
    done = 0
    for gi, g in enumerate(main):
        for it in g:
            e.run(it)
        if gi >= start and n > 0:
            target = total * (gi - start + 1) / n
            if slots is not None:
                target = max(target, 0)
            while fi < len(fill) and done + cost(fill[fi]) <= target + 0.5:
                e.run(fill[fi])
                done += cost(fill[fi])
                fi += 1
    while fi < len(fill):
        e.run(fill[fi])
        fi += 1


STAMP = False
STAMP_OFF = 15 * MB + 512 * 1024


def _stamp(e, idx):
    e("s_waitcnt lgkmcnt(0)")
    e("s_memrealtime s[100:101]")
    e("s_waitcnt lgkmcnt(0)")
    e(f"v_mov_b32 v{248+idx}, s100")
    e.lgkm = []


def stamp_begin(e):
    if globals()["STAMP"]:
        _stamp(e, 0)
        for i in range(2, 8):
            e(f"v_mov_b32 v{248+i}, 0")


def stamp_mid(e, idx):
    if globals()["STAMP"]:
        _stamp(e, 2 + idx)


def stamp_end(e, kidx, swave, sws):
    if globals()["STAMP"]:
        e("s_waitcnt vmcnt(0)")
        _stamp(e, 1)
        e("s_lshl_b32 s100, s2, 3")
        e(f"s_add_u32 s100, s100, s{swave}")
        e("s_lshl_b32 s100, s100, 5")
        e(f"s_add_u32 s100, s100, {STAMP_OFF + kidx * 256 * 8 * 32}")
        e("v_mov_b32 v8, 0")
        e("s_mov_b64 exec, 1")
        e(f"buffer_store_dwordx4 v[248:251], v8, s[{sws}:{sws+3}], s100 offen")
        e(f"buffer_store_dwordx4 v[252:255], v8, s[{sws}:{sws+3}], s100 offen offset:16")
        if globals().get("DBGSRD"):
            d = globals()["DBGSRD"]
            e(f"s_cmp_eq_u32 s{swave}, 4")
            e("s_cselect_b32 s100, 0, 0x1000")
            e("s_mul_i32 s101, s2, 1599")
            e("s_lshr_b32 s101, s101, 16")
            e("s_mul_i32 s3, s101, 41")
            e("s_cmp_eq_u32 s3, s2")
            e("s_cselect_b32 s3, 0, 0x1000")
            e("s_add_u32 s100, s100, s3")
            e("s_lshl_b32 s101, s101, 3")
            e("s_add_u32 s100, s100, s101")
            e(f"buffer_store_dwordx2 v[248:249], v8, s[{d}:{d+3}], s100 offen offset:8")
```
